```python
import torch

def _softmax(x, axis=-1):
    return torch.softmax(x, dim=axis)
def _gelu(x):
    return torch.nn.functional.gelu(x, approximate="tanh")
def _silu(x):
    return torch.nn.functional.silu(x)
def _sigmoid(x):
    return torch.sigmoid(x)
def _layernorm(x, axis=-1, eps=1e-5):
    m = x.mean(dim=axis, keepdim=True)
    v = x.var(dim=axis, keepdim=True, unbiased=False)
    return (x - m) / torch.sqrt(v + eps)
def _scatter_add(tgt, idx, src, axis=0):
    return tgt.clone().index_add_(axis, idx, src)
def _segment_sum(src, seg, n):
    out = torch.zeros((n,) + src.shape[1:], dtype=src.dtype)
    return out.index_add_(0, seg, src)
def _pad(x, pw):
    flat = tuple(v for pair in reversed(pw) for v in pair)
    return torch.nn.functional.pad(x, flat)

kernel_name = 'standalone__block_sparse_attn__prompt'

def setup_inputs():

    _w = (lambda a: (lambda t: t.to(torch.bfloat16) if t.is_floating_point() else t)(torch.as_tensor(a)))
    B, H, S, D = 1, 16, 2048, 256
    bs = 64; nb = S // bs
    bm = (torch.rand(nb, nb) < 0.15).to(float)
    bm = torch.maximum(bm, torch.eye(nb, dtype=float))
    return {
        "q": _w((lambda *s: torch.randn(*s, dtype=torch.bfloat16) * 0.8)(B, H, S, D)),
        "k": _w((lambda *s: torch.randn(*s, dtype=torch.bfloat16) * 0.8)(B, H, S, D)),
        "v": _w((lambda *s: torch.randn(*s, dtype=torch.bfloat16) * 0.05)(B, H, S, D)),
        "block_mask": _w(bm),
    }

def reference(q, k, v, block_mask):
    B, H, S, D = q.shape
    bs = 64
    mask = torch.kron(block_mask, torch.ones((bs, bs), dtype=q.dtype))[:S, :S]
    scores = torch.einsum("bhqd,bhkd->bhqk", q, k) * (D ** -0.5)
    scores = torch.where(mask[None, None] > 0, scores, -1e9)
    p = _softmax(scores, axis=-1)
    return torch.einsum("bhqk,bhkd->bhqd", p, v)
```

```python
import sys
OPT = dict(stamp=0, prio_l=0, prio_c=0, ntq=0, nto=0, ntkv=0)
for a in sys.argv[2:]:
    k, v = a.split('=')
    OPT[k] = int(v)

NAME = "standalone__block_sparse_attn__prompt"
PS = 1040
SLOT = 32 * PS
NSLOT = 4
P_OFF = NSLOT * SLOT
L_OFF = P_OFF + 8192
M_OFF = L_OFF + 2048
I_OFF = M_OFF + 2048
LDS_BYTES = I_OFF + 64
CSCALE = 0x3DB8AA3B

out = []
def e(s): out.append("    " + s)
def lab(s): out.append(s + ":")
def cm(s): out.append("    ; " + s)

sQp, sKp, sVp, sMp, sOp, sDbg, sWs = 4, 6, 8, 10, 12, 14, 16
sW = 20
sWave, sIdx, sHA = 24, 25, 26
sMode = 27
sKm, sKb, sVm, sVb, sMA, sMB, sX, sSl, sSo, sT0, sT1, sT2, sQB, sKu, sVu, sEm, sM0w, sSt = range(28, 46)
sTm = 46
cT, cNA, cN, cSl, cC, cCB, cOA, cOB, cFail, cT0, cT1, cFirst = range(28, 40)
cV0, cV1 = 40, 42

O = 0; Q = 64; S = 128; E = 144; PO = 160; PF = 168; FB = 192
aK, aKl, aQl, aV0, aV1, aV0l, aV1l, aPw, aP01, aP10, aP11, aLw, aLr0, aLr1, l0, l1, nM, nMB, mx, aO0, aO1, aMw, t0, t1, t2, t3, nMA = range(224, 251)
def vr(b, n): return f"v[{b}:{b+n-1}]"

class LDS:
    def __init__(s, init=()): s.q = list(init)
    def op(s, txt, tag): e(txt); s.q.append(tag)
    def need(s, *tags):
        idx = max([s.q.index(t) for t in tags if t in s.q], default=-1)
        if idx < 0: return
        n = len(s.q) - 1 - idx
        e(f"s_waitcnt lgkmcnt({min(n,15)})")
        s.q = s.q[idx+1:]
    def drain(s):
        e("s_waitcnt lgkmcnt(0)"); s.q = []

def rdK(L, x): L.op(f"ds_read_b128 {vr(FB+4*(x&7),4)}, v{aK} offset:{32*x}", f"K{x}")
def rdQ(L, x): L.op(f"ds_read_b128 {vr(Q+4*x,4)}, v{aK} offset:{32*x}", f"Q{x}")
def rdV(L, f, ee):
    u, dt = f >> 1, f & 1
    b, s = u >> 1, u & 1
    L.op(f"ds_read_b64_tr_b16 {vr(FB+4*f+2*ee,2)}, v{aV1 if b else aV0} offset:{(16*s+2*ee)*PS+64*dt}", f"V{f}_{ee}")
PFI = {(1,0):0, (1,1):1, (0,2):2, (1,2):3, (0,3):4, (1,3):5}
def preg(a, u): return PO + 4*u if (a == 0 and u < 2) else PF + 4*PFI[(a,u)]
def rdP(L, a, u):
    b, s = u >> 1, u & 1
    ar = {(0,1):aP01, (1,0):aP10, (1,1):aP11}[(a,b)]
    L.op(f"ds_read_b128 {vr(preg(a,u),4)}, v{ar} offset:{1024*s}", f"P{a}_{u}")
def adv_slot(cond_scc):
    if cond_scc:
        e(f"s_cselect_b32 s{cT0}, {SLOT}, 0")
        e(f"s_add_u32 s{cSl}, s{cSl}, s{cT0}")
    else:
        e(f"s_add_u32 s{cSl}, s{cSl}, {SLOT}")
    e(f"s_cmp_eq_u32 s{cSl}, {NSLOT*SLOT}")
    e(f"s_cselect_b32 s{cSl}, 0, s{cSl}")

QTAIL = [[('V',0,0),('V',0,1),('V',1,0)], [('V',1,1),('P',1,0)], [('V',2,0),('V',2,1)], [('V',3,0),('V',3,1)], [('P',1,1),('P',0,2)]]
def do_rd(L, r):
    if r[0] == 'V': rdV(L, r[1], r[2])
    else: rdP(L, r[1], r[2])

def phaseQ(skip):
    L = LDS([] if skip else ["K0","K1","K2","K3"])
    def mf(x):
        if skip: return
        L.need(f"K{x}")
        e(f"v_mfma_f32_32x32x16_bf16 {vr(S,16)}, {vr(FB+4*(x&7),4)}, {vr(Q+4*x,4)}, {'0' if x==0 else vr(S,16)}")
    L.op(f"ds_write_b128 v{aPw}, {vr(PO,4)}", "W0")
    L.op(f"ds_write_b128 v{aPw}, {vr(PO+4,4)} offset:1024", "W1")
    kr = {-1:[4], 0:[5,6], 1:[7,8], 2:[9,10], 3:[11], 4:[12], 5:[13], 6:[14], 7:[15]}
    if not skip:
        for x in kr[-1]: rdK(L, x)
    for g in range(11):
        mf(g)
        if not skip:
            for x in kr.get(g, []): rdK(L, x)
        if g < 8:
            e(f"v_add_f32 v{l0}, v{l0}, v{E+2*g}")
            e(f"v_add_f32 v{l1}, v{l1}, v{E+2*g+1}")
        if g == 8:
            e(f"v_add_f32 v{t0}, v{l0}, v{l1}")
            e(f"s_cmp_lg_u32 s{cT}, -1")
            adv_slot(True)
            L.op(f"ds_write_b32 v{aLw}, v{t0}", "WL")
        if g == 9:
            e(f"v_add_u32 v{aV0}, s{cSl}, v{aV0l}")
            e(f"v_add_u32 v{aV1}, s{cSl}, v{aV1l}")
    L.drain()
    e("s_barrier")
    for k, g in enumerate(range(11, 16)):
        for r in QTAIL[k]: do_rd(L, r)
        mf(g)
    return L

def softmax_ops():
    ops = []
    F = lambda k: f"v_fma_f32 v{E+k}, v{S+k}, s{cC}, v{nM}"
    X = lambda k: f"v_exp_f32 v{E+k}, v{E+k}"
    C = lambda k: f"v_cvt_pk_bf16_f32 v{PO+k}, v{E+2*k}, v{E+2*k+1}"
    g = {i: [] for i in range(16)}
    g[2] = [F(0),F(1),F(2)]
    g[3] = [X(0),F(3),F(4)]
    g[4] = [X(1),F(5),F(6)]
    g[5] = [X(2),F(7),F(8)]
    g[6] = [X(3),F(9),X(4),F(10)]
    g[7] = [X(5),F(11),X(6),C(0)]
    g[8] = [X(7),F(12),X(8),C(1)]
    g[9] = [X(9),F(13),F(14),C(2)]
    g[10] = [X(10),F(15),C(3)]
    g[11] = [X(11),C(4)]
    g[12] = [X(12),C(5)]
    g[13] = [X(13),X(14)]
    g[14] = [X(15),C(6)]
    g[15] = [C(7)]
    return g

def mfV(L, m, first):
    u, a, dt = m >> 2, (m >> 1) & 1, m & 1
    f = 2*u + dt
    L.need(f"V{f}_0", f"V{f}_1", f"P{a}_{u}")
    o = O + 16*(2*a+dt)
    e(f"v_mfma_f32_32x32x16_bf16 {vr(o,16)}, {vr(FB+4*f,4)}, {vr(preg(a,u),4)}, {'0' if first else vr(o,16)}")

VRD = {0:[('V',4,0),('V',4,1),('V',5,0)], 1:[('V',5,1),('P',1,2),('V',6,0)], 2:[('V',6,1),('V',7,0)], 3:[('V',7,1),('P',0,3)], 4:[('P',1,3)]}
def phaseV_head(L0, first):
    L = LDS(L0.q); sm = softmax_ops()
    n0 = len(out)
    for m in range(4):
        mfV(L, m, first)
        for r in VRD.get(m, []): do_rd(L, r)
        if m == 2:
            have = len(out) - n0 + 2 + 2
            if have < 12: e(f"s_nop {12-have-1}")
            e(f"s_cmp_eq_u32 s{sMode}, 1")
            e(f"s_cbranch_scc1 L_max{int(first)}")
            lab(f"L_maxret{int(first)}")
        for o in sm[m]: e(o)
    return L
def phaseV_mid(L):
    sm = softmax_ops()
    for m in range(4, 11):
        mfV(L, m, False)
        for r in VRD.get(m, []): do_rd(L, r)
        for o in sm[m]: e(o)
        if m == 5:
            e(f"s_add_u32 s{cT1}, s{cT}, 2")
            e(f"s_cmp_lt_u32 s{cT1}, s{cN}")
            adv_slot(True)
        if m == 9:
            e(f"v_add_u32 v{aK}, s{cSl}, v{aKl}")
            e(f"s_cmp_eq_u32 s{cT1}, s{cNA}")
    L.drain()
    e("s_barrier")
def phaseV_tail(qvar):
    L = LDS(); sm = softmax_ops()
    if qvar:
        e(f"v_add_u32 v{aK}, s{cSl}, v{aQl}")
    for k, m in enumerate(range(11, 16)):
        if qvar:
            for x in range(16)[4*k:4*k+4]: rdQ(L, x)
        elif k < 4: rdK(L, k)
        mfV(L, m, False)
        for o in sm[m]: e(o)
    if qvar:
        adv_slot(False)
        L.op(f"ds_write_b32 v{aMw}, v{mx}", "WM")
        e(f"v_add_u32 v{aK}, s{cSl}, v{aKl}")
        e(f"v_xor_b32 v{aMw}, 0x400, v{aMw}")
        e(f"v_mov_b32 v{mx}, 0xff800000")
        cm("switch scale / reference to the next unit (swap)")
        e(f"s_mov_b32 s{cT0}, s{cC}")
        e(f"s_mov_b32 s{cC}, s{cCB}")
        e(f"s_mov_b32 s{cCB}, s{cT0}")
        e(f"v_swap_b32 v{nM}, v{nMB}")
        L.drain()
        e("s_barrier")
        for k in range(4): rdK(L, k)

def epilogue():
    e(f"ds_read_b128 {vr(PF,4)}, v{aLr0}")
    e(f"ds_read_b128 {vr(PF+4,4)}, v{aLr1}")
    e(f"v_xor_b32 v{aLr0}, 0x400, v{aLr0}")
    e(f"v_xor_b32 v{aLr1}, 0x400, v{aLr1}")
    e(f"s_mov_b32 s{cT0}, 0x30800000")
    e(f"s_mov_b32 s{cT1}, 0x1e000000")
    e("s_waitcnt lgkmcnt(0)")
    for a in range(2):
        b = PF + 4*a
        e(f"v_add_f32 v{b}, v{b}, v{b+1}")
        e(f"v_add_f32 v{b+2}, v{b+2}, v{b+3}")
    for a in range(2):
        b = PF + 4*a
        e(f"v_add_f32 v{b}, v{b}, v{b+2}")
    for a in range(2):
        b = PF + 4*a
        e(f"v_subrev_u32 v{b+1}, s{cT0}, v{b}")
        e(f"v_rcp_f32 v{b}, v{b}")
    e(f"v_max_u32 v{PF+1}, v{PF+1}, v{PF+5}")
    e(f"v_cmp_lt_u32 vcc, s{cT1}, v{PF+1}")
    e(f"s_or_b32 s{cFail}, s{cFail}, vcc_lo")
    nt = " nt" if OPT['nto'] else ""
    for a in range(2):
        for dt in range(2):
            o = O + 16*(2*a+dt); r = PF + 4*a
            for k in range(8):
                e(f"v_pk_mul_f32 {vr(o+2*k,2)}, {vr(o+2*k,2)}, {vr(r,2)} op_sel_hi:[1,0]")
            for gp in range(2):
                for k in range(4):
                    e(f"v_cvt_pk_bf16_f32 v{o+8*gp+k}, v{o+8*gp+2*k}, v{o+8*gp+2*k+1}")
            e(f"v_permlane32_swap_b32 v{o}, v{o+2}")
            e(f"v_permlane32_swap_b32 v{o+1}, v{o+3}")
            e(f"buffer_store_dwordx4 {vr(o,4)}, v{aO1 if a else aO0}, s[{sW}:{sW+3}], s{cOA} offen offset:{64*dt}{nt}")
            e(f"v_permlane32_swap_b32 v{o+8}, v{o+10}")
            e(f"v_permlane32_swap_b32 v{o+9}, v{o+11}")
            e(f"buffer_store_dwordx4 {vr(o+8,4)}, v{aO1 if a else aO0}, s[{sW}:{sW+3}], s{cOA} offen offset:{64*dt+32}{nt}")
    e(f"s_mov_b32 s{cOA}, s{cOB}")

def stamp():
    if not OPT['stamp']: return
    e(f"s_memtime s[{sTm}:{sTm+1}]")
    e("s_waitcnt lgkmcnt(0)")
    e(f"s_mov_b32 m0, s{sSt}")
    e(f"s_min_u32 s{sSt}, s{sSt}, 126")
    e(f"s_add_u32 s{sSt}, s{sSt}, 1")
    e(f"s_cmp_ge_u32 m0, 64")
    lbl = f"L_st{len(out)}"
    e(f"s_cbranch_scc1 {lbl}a")
    e(f"v_writelane_b32 v40, s{sTm}, m0")
    e(f"s_branch {lbl}b")
    lab(lbl + "a")
    e(f"v_writelane_b32 v41, s{sTm}, m0")
    lab(lbl + "b")

hdr = open("cdna_kernels/" + NAME + ".s.ref").read().split("\n")
hdr = [h for h in hdr if h.startswith(";") and "@launch" not in h]
out += hdr
out.append(f"; @launch grid=(256,1,1) block=(512,1,1) lds={LDS_BYTES}")
out += ['.amdgcn_target "amdgcn-amd-amdhsa--gfx950"', ".text", f".globl {NAME}_kernel", ".p2align 8",
        f".type {NAME}_kernel,@function"]
lab(f"{NAME}_kernel")
e("s_cmp_ge_u32 s2, 256")
e("s_cbranch_scc1 L_end")
e("s_load_dwordx8 s[4:11], s[0:1], 0")
e("s_load_dwordx4 s[12:15], s[0:1], 32")
if OPT['stamp']: e("s_load_dwordx2 s[16:17], s[0:1], 48")
e(f"v_readfirstlane_b32 s{sWave}, v0")
e("v_and_b32 v0, 63, v0")
e(f"s_lshr_b32 s{sIdx}, s2, 3")
e(f"s_and_b32 s{sHA}, s2, 7")
e(f"s_lshl_b32 s{sHA}, s{sHA}, 21")
e(f"s_lshr_b32 s{sWave}, s{sWave}, 6")
e(f"s_mov_b32 s{sMode}, 0")
e(f"s_mov_b32 s{sW+3}, 0x20000")
e(f"s_cmp_lt_u32 s{sWave}, 4")
e("s_cbranch_scc1 L_compute")

cm("---------------- loader waves ----------------")
if OPT['prio_l']: e(f"s_setprio {OPT['prio_l']}")
e(f"s_sub_u32 s{sWave}, s{sWave}, 4")
e("v_and_b32 v1, 31, v0")
e("v_lshrrev_b32 v2, 5, v0")
e("v_lshlrev_b32 v3, 6, v1")
e("v_lshl_or_b32 v3, v2, 5, v3")
e("v_lshlrev_b32 v4, 4, v1")
e("v_lshl_or_b32 v4, v2, 14, v4")
e(f"s_lshr_b32 s{sT0}, s{sWave}, 1")
e(f"s_lshl_b32 s{sT0}, s{sT0}, 13")
e(f"s_and_b32 s{sT1}, s{sWave}, 1")
e(f"s_lshl_b32 s{sT1}, s{sT1}, 10")
e(f"s_add_u32 s{sT0}, s{sT0}, s{sT1}")
e(f"v_add_u32 v8, s{sT0}, v4")
for u in range(1, 8):
    e(f"v_add_u32 v{8+u}, {1008*(u&3) + 512*(u>>2)}, v8")
e(f"s_mul_i32 s{sM0w}, s{sWave}, {8*PS}")
if OPT['stamp']:
    e(f"s_mov_b32 s{sSt}, 0"); e("v_mov_b32 v40, 0"); e("v_mov_b32 v41, 0")
e("s_waitcnt lgkmcnt(0)")
stamp()
e(f"s_mov_b64 s[{sW}:{sW+1}], s[{sMp}:{sMp+1}]")
e(f"s_mov_b32 s{sW+2}, 2048")
e(f"buffer_load_dwordx4 v[16:19], v3, s[{sW}:{sW+3}], 0 offen")
e(f"buffer_load_dwordx4 v[20:23], v3, s[{sW}:{sW+3}], 0 offen offset:16")
lab("L_lpass")
e(f"s_mov_b32 s{sW+2}, 0x1000000")
e(f"s_mov_b32 s{sX}, 0")
e(f"s_mov_b32 s{sSl}, s{sM0w}")
e(f"s_mov_b32 s{sKu}, 0")
e(f"s_mov_b32 s{sVu}, 0")
e(f"s_mov_b32 s{sKb}, s{sHA}")
e(f"s_mov_b32 s{sVb}, s{sHA}")
e(f"s_lshl_b32 s{sSo}, s{sIdx}, 15")
e(f"s_add_u32 s{sSo}, s{sSo}, s{sHA}")

def issue(ptr, nt):
    e(f"s_mov_b64 s[{sW}:{sW+1}], s[{ptr}:{ptr+1}]")
    e(f"s_mov_b32 m0, s{sSl}")
    e(f"s_add_u32 s{sT0}, s{sSl}, {4*PS}")
    for u in range(8):
        if u == 4:
            e(f"s_mov_b32 m0, s{sT0}")
            e(f"s_add_u32 s{sSl}, s{sSl}, {SLOT}")
        e(f"buffer_load_dwordx4 v{8+u}, s[{sW}:{sW+3}], s{sSo} offen offset:{PS*(u&3)}{' nt' if nt else ''} lds")
    e(f"s_cmp_ge_u32 s{sSl}, {NSLOT*SLOT}")
    e(f"s_cselect_b32 s{sSl}, s{sM0w}, s{sSl}")
def pick(m, b):
    e(f"s_ff1_i32_b32 s{sT0}, s{m}")
    e(f"s_bitset0_b32 s{m}, s{sT0}")
    e(f"s_lshl_b32 s{sT0}, s{sT0}, 15")
    e(f"s_add_u32 s{sSo}, s{sT0}, s{b}")
nsync = [0]
def sync():
    k = nsync[0]; nsync[0] += 1
    e(f"s_add_u32 s{sX}, s{sX}, 1")
    e(f"s_cmp_gt_u32 s{sX}, 5")
    e(f"s_cbranch_scc1 L_sy{k}_n")
    e(f"s_cmp_lt_u32 s{sX}, 4")
    e(f"s_cbranch_scc1 L_sy{k}_e")
    e("s_waitcnt vmcnt(24)")
    stamp()
    e("s_barrier")
    stamp()
    lab(f"L_sy{k}_n")
    e("s_waitcnt vmcnt(16)")
    stamp()
    e("s_barrier")
    stamp()
    lab(f"L_sy{k}_e")

issue(sQp, OPT['ntq'])
e(f"s_cmp_lg_u32 s{sMode}, 0")
e("s_cbranch_scc1 L_havemask")
cm("block mask -> one bit row per lane")
e(f"s_mov_b32 s{sT0}, 0x7f807f80")
e(f"s_mov_b32 s{sT1}, 0x000f000f")
e(f"s_mov_b32 s{sT2}, -1")
e("v_mov_b32 v5, 0")
e("s_waitcnt vmcnt(8)")
for k in range(8): e(f"v_pk_add_u16 v{16+k}, v{16+k}, s{sT2}")
for k in range(8): e(f"v_pk_min_u16 v{16+k}, v{16+k}, s{sT0}")
for k in range(8): e(f"v_pk_sub_u16 v{16+k}, v{16+k}, s{sT0}")
for k in range(8): e(f"v_pk_lshrrev_b16 v{16+k}, s{sT1}, v{16+k}")
for k in range(8): e(f"v_lshl_or_b32 v5, v{16+k}, {2*k}, v5")
e("v_lshrrev_b32 v6, 15, v5")
e("v_or_b32 v5, v5, v6")
e("v_and_b32 v5, 0xffff, v5")
e("v_mov_b32 v6, v5")
e("s_nop 1")
e("v_permlane32_swap_b32 v5, v6")
e("s_nop 0")
e("v_lshl_or_b32 v5, v6, 16, v5")
e("v_cmp_eq_u32 vcc, 0, v5")
e(f"s_mov_b32 s{sEm}, vcc_lo")
e("s_nop 0")
e("v_cndmask_b32 v5, v5, -1, vcc")
e("s_nop 0")
e(f"v_readlane_b32 s{sMA}, v5, s{sIdx}")
lab("L_havemask")
e(f"s_mov_b32 s{sKm}, s{sMA}")
e(f"s_mov_b32 s{sVm}, s{sMA}")
pick(sKm, sKb)
issue(sKp, OPT['ntkv'])
e(f"s_mov_b32 s{sX}, 2")
e(f"s_cmp_lg_u32 s{sMode}, 0")
e("s_cbranch_scc1 L_lloop")
cm("pair this q block with the one of opposite rank")
e("v_bcnt_u32_b32 v6, v5, 0")
e("v_lshl_or_b32 v6, v6, 5, v1")
e("s_nop 0")
e(f"v_readlane_b32 s{sT0}, v6, s{sIdx}")
e("s_nop 1")
e(f"v_cmp_ge_u32 vcc, s{sT0}, v6")
e(f"s_bcnt1_i32_b32 s{sT1}, vcc_lo")
e(f"s_mov_b32 s{sQB}, 0")
for b in range(10, -1, -1):
    e(f"s_or_b32 s{sT0}, s{sQB}, {1<<b}")
    e(f"v_cmp_le_u32 vcc, s{sT0}, v6")
    e(f"s_bcnt1_i32_b32 s{sT2}, vcc_lo")
    e(f"s_cmp_ge_u32 s{sT2}, s{sT1}")
    e(f"s_cselect_b32 s{sQB}, s{sT0}, s{sQB}")
e(f"s_and_b32 s{sQB}, s{sQB}, 31")
e(f"v_readlane_b32 s{sMB}, v5, s{sQB}")
e(f"s_bcnt1_i32_b32 s{sT0}, s{sMA}")
e(f"v_mov_b32 v16, s{sT0}")
e(f"s_bcnt1_i32_b32 s{sT0}, s{sMB}")
e(f"v_mov_b32 v17, s{sT0}")
e(f"v_mov_b32 v18, s{sQB}")
e(f"v_mov_b32 v19, s{sEm}")
e(f"v_mov_b32 v20, {I_OFF}")
e("ds_write_b128 v20, v[16:19]")
e("s_waitcnt lgkmcnt(0)")
lab("L_lloop")
e(f"s_cmp_lg_u32 s{sKm}, 0")
e("s_cbranch_scc1 L_lK")
e(f"s_cmp_lg_u32 s{sKu}, 0")
e("s_cbranch_scc1 L_lV")
e(f"s_mov_b32 s{sKu}, 1")
e(f"s_mov_b32 s{sKm}, s{sMB}")
e(f"s_add_u32 s{sKb}, s{sHA}, 0x100000")
e(f"s_lshl_b32 s{sSo}, s{sQB}, 15")
e(f"s_add_u32 s{sSo}, s{sSo}, s{sKb}")
issue(sQp, OPT['ntq']); sync()
lab("L_lK")
pick(sKm, sKb)
issue(sKp, OPT['ntkv']); sync()
lab("L_lV")
e(f"s_cmp_lg_u32 s{sVm}, 0")
e("s_cbranch_scc1 L_lV2")
e(f"s_mov_b32 s{sVu}, 1")
e(f"s_mov_b32 s{sVm}, s{sMB}")
e(f"s_add_u32 s{sVb}, s{sHA}, 0x100000")
lab("L_lV2")
pick(sVm, sVb)
issue(sVp, OPT['ntkv']); sync()
e(f"s_cmp_lg_u32 s{sVm}, 0")
e("s_cbranch_scc1 L_lloop")
e(f"s_cmp_eq_u32 s{sVu}, 0")
e("s_cbranch_scc1 L_lloop")
e("s_waitcnt vmcnt(8)"); stamp()
e("s_barrier"); stamp()
e("s_barrier")
e("s_waitcnt vmcnt(0)"); stamp()
e("s_barrier"); stamp()
e("s_barrier"); stamp()
e("s_barrier"); stamp()
if OPT['stamp']:
    e(f"s_cmp_lg_u32 s{sWave}, 0")
    e("s_cbranch_scc1 L_nost")
    e(f"s_mov_b64 s[{sW}:{sW+1}], s[{sWs}:{sWs+1}]")
    e(f"s_lshl_b32 s{sT0}, s2, 9")
    e("v_lshlrev_b32 v42, 2, v0")
    e(f"buffer_store_dword v40, v42, s[{sW}:{sW+3}], s{sT0} offen")
    e(f"buffer_store_dword v41, v42, s[{sW}:{sW+3}], s{sT0} offen offset:256")
    e("s_waitcnt vmcnt(0)")
    lab("L_nost")
e(f"v_mov_b32 v20, {I_OFF}")
e("ds_read_b32 v16, v20 offset:16")
e("s_waitcnt lgkmcnt(0)")
e(f"v_readfirstlane_b32 s{sMode}, v16")
e("s_nop 3")
e(f"s_cmp_lg_u32 s{sMode}, 0")
e("s_cbranch_scc1 L_lpass")
e("s_endpgm")

lab("L_compute")
if OPT['prio_c']: e(f"s_setprio {OPT['prio_c']}")
e(f"s_and_b32 s{cT0}, s{sWave}, 1")
e(f"s_lshr_b32 s{cT1}, s{sWave}, 1")
e("v_and_b32 v1, 31, v0")
e("v_lshrrev_b32 v2, 5, v0")
e("v_and_b32 v3, 3, v0")
e("v_bfe_u32 v4, v0, 2, 2")
e("v_and_b32 v5, 16, v0")
e("v_lshl_or_b32 v6, v3, 2, v4")
e("v_or_b32 v6, v6, v5")
e(f"v_mul_u32_u24 v6, {PS}, v6")
e("v_lshl_add_u32 v6, v2, 4, v6")
e(f"s_lshl_b32 s{cV0}, s{cT0}, 9")
e(f"s_lshl_b32 s{cV1}, s{cT1}, 9")
e(f"v_add_u32 v{aQl}, s{cV0}, v6")
e(f"v_add_u32 v{aKl}, s{cV1}, v6")
e("v_lshl_add_u32 v6, v4, 2, v2")
e(f"v_mul_u32_u24 v6, {PS}, v6")
e("v_lshl_add_u32 v6, v5, 1, v6")
e("v_lshl_add_u32 v6, v3, 3, v6")
e(f"s_lshl_b32 s{cV0}, s{sWave}, 7")
e(f"v_add_u32 v6, s{cV0}, v6")
e(f"v_add_u32 v{aV0l}, s{cV1}, v6")
e(f"s_xor_b32 s{cV1}, s{cV1}, 512")
e(f"v_add_u32 v{aV1l}, s{cV1}, v6")
e("v_lshlrev_b32 v6, 4, v0")
e(f"s_lshl_b32 s{cV0}, s{cT0}, 12")
e(f"s_lshl_b32 s{cV1}, s{cT1}, 11")
e(f"s_or_b32 s{cV0}, s{cV0}, s{cV1}")
for reg, x in ((aPw,0),(aP01,2048),(aP10,4096),(aP11,6144)):
    e(f"s_xor_b32 s{cV1}, s{cV0}, {x}")
    e(f"s_add_u32 s{cV1}, s{cV1}, {P_OFF}")
    e(f"v_add_u32 v{reg}, s{cV1}, v6")
e("v_lshlrev_b32 v6, 4, v1")
e(f"s_lshl_b32 s{cV0}, s{cT0}, 9")
e(f"s_add_u32 s{cV1}, s{cV0}, {L_OFF}")
e(f"v_add_u32 v{aLr0}, s{cV1}, v6")
e(f"v_xor_b32 v{aLr1}, 0x200, v{aLr0}")
e(f"v_lshl_add_u32 v{aLw}, v2, 2, v{aLr0}")
e(f"s_lshl_b32 s{cV1}, s{cT1}, 3")
e(f"v_add_u32 v{aLw}, s{cV1}, v{aLw}")
e(f"v_add_u32 v{aMw}, {M_OFF-L_OFF+1024}, v{aLw}")
e(f"v_xor_b32 v{aLw}, 0x400, v{aLw}")
e("v_lshlrev_b32 v6, 9, v1")
e("v_lshl_add_u32 v6, v2, 4, v6")
e(f"s_lshl_b32 s{cV0}, s{cT0}, 14")
e(f"s_lshl_b32 s{cV1}, s{sWave}, 7")
e(f"s_add_u32 s{cV0}, s{cV0}, s{cV1}")
e(f"v_add_u32 v{aO0}, s{cV0}, v6")
e(f"v_xor_b32 v{aO1}, 0x4000, v{aO0}")
e(f"v_mov_b32 v{nM}, 0")
e(f"v_mov_b32 v{nMB}, 0")
e(f"v_mov_b32 v{t1}, {I_OFF}")
e(f"s_mov_b32 s{cFail}, 0")
e("s_waitcnt lgkmcnt(0)")
e(f"s_mov_b64 s[{sW}:{sW+1}], s[{sOp}:{sOp+1}]")
e(f"s_mov_b32 s{sW+2}, 0x1000000")
lab("L_cpass")
e("s_barrier")
e(f"ds_read_b128 {vr(PF,4)}, v{t1}")
e(f"s_mov_b32 s{cSl}, 0")
e(f"s_mov_b32 s{cT}, -2")
e(f"s_lshl_b32 s{cOA}, s{sIdx}, 15")
e(f"s_add_u32 s{cOA}, s{cOA}, s{sHA}")
e("s_waitcnt lgkmcnt(0)")
e(f"v_readfirstlane_b32 s{cNA}, v{PF}")
e(f"v_readfirstlane_b32 s{cN}, v{PF+1}")
e(f"v_readfirstlane_b32 s{cOB}, v{PF+2}")
e(f"v_readfirstlane_b32 s{cT0}, v{PF+3}")
e("s_nop 3")
e(f"s_add_u32 s{cN}, s{cN}, s{cNA}")
e(f"s_bitcmp1_b32 s{cT0}, s{sIdx}")
e(f"s_cselect_b32 s{cCB}, 0, {CSCALE}")
e(f"s_bitcmp1_b32 s{cT0}, s{cOB}")
e(f"s_cselect_b32 s{cC}, 0, {CSCALE}")
e(f"s_lshl_b32 s{cOB}, s{cOB}, 15")
e(f"s_add_u32 s{cOB}, s{cOB}, s{sHA}")
e(f"s_add_u32 s{cOB}, s{cOB}, 0x100000")
lab("L_vtailQ")
phaseV_tail(True)
e("s_branch L_post")

for f in range(2):
    lab(f"L_max{f}")
    for k in range(8): e(f"v_max3_f32 v{mx}, v{S+2*k}, v{S+2*k+1}, v{mx}")
    e(f"s_branch L_maxret{f}")
lab("L_qskip")
LQ = phaseQ(True)
e("s_branch L_v")
lab("L_vfirst")
phaseV_head(LQ, True)
e("s_branch L_vmid")

out.append(".p2align 6")
lab("L_q")
LQ2 = phaseQ(False)
assert LQ2.q == LQ.q, (LQ.q, LQ2.q)
lab("L_v")
e(f"s_cmp_lg_u32 s{cFirst}, 0")
e("s_cbranch_scc1 L_vfirst")
LV = phaseV_head(LQ, False)
lab("L_vmid")
phaseV_mid(LV)
e("s_cbranch_scc1 L_vtailQ")
phaseV_tail(False)
lab("L_post")
cm("iteration t done; t += 1")
e(f"s_add_u32 s{cT}, s{cT}, 1")
e(f"s_mov_b32 s{cFirst}, 0")
e(f"s_cmp_eq_u32 s{cT}, s{cNA}")
e("s_cbranch_scc1 L_epi")
e(f"s_cmp_eq_u32 s{cT}, s{cN}")
e("s_cbranch_scc1 L_epi")
e(f"s_cmp_eq_u32 s{cT}, 0")
e("s_cbranch_scc1 L_newunit")
lab("L_next")
e(f"s_add_u32 s{cT1}, s{cT}, 1")
e(f"s_cmp_lt_u32 s{cT1}, s{cN}")
e("s_cbranch_scc1 L_q")
e("s_branch L_qskip")
lab("L_epi")
epilogue()
e(f"s_cmp_eq_u32 s{cT}, s{cN}")
e("s_cbranch_scc1 L_done")
lab("L_newunit")
e(f"s_mov_b32 s{cFirst}, 1")
e(f"v_mov_b32 v{l0}, 0")
e(f"v_mov_b32 v{l1}, 0")
e(f"v_xor_b32 v{aLw}, 0x400, v{aLw}")
e("s_branch L_next")
lab("L_done")
cm("pass control: 0 optimistic -> (range check failed) 1 true max -> 2 final")
e(f"s_cmp_lg_u32 s{cFail}, 0")
e(f"s_cselect_b32 s{cT0}, 1, 0")
e(f"s_cmp_eq_u32 s{sMode}, 1")
e(f"s_cselect_b32 s{cT0}, 2, s{cT0}")
e(f"s_cmp_eq_u32 s{sMode}, 2")
e(f"s_cselect_b32 s{sMode}, 0, s{cT0}")
e(f"v_mov_b32 v{t0}, s{sMode}")
e(f"ds_write_b32 v{t1}, v{t0} offset:16")
e(f"ds_write_b32 v{aMw}, v{mx}")
e("s_waitcnt lgkmcnt(0)")
e("s_barrier")
e(f"s_cmp_eq_u32 s{sMode}, 0")
e("s_cbranch_scc1 L_end")
e("s_waitcnt vmcnt(0)")
e(f"s_cmp_eq_u32 s{sMode}, 1")
e("s_cbranch_scc1 L_cpass")
e(f"ds_read_b128 {vr(PF,4)}, v{aLr0} offset:{M_OFF-L_OFF}")
e(f"ds_read_b128 {vr(PF+4,4)}, v{aLr0} offset:{M_OFF-L_OFF+1024}")
e("s_waitcnt lgkmcnt(0)")
e(f"v_max3_f32 v{PF}, v{PF}, v{PF+1}, v{PF+2}")
e(f"v_max3_f32 v{PF+4}, v{PF+4}, v{PF+5}, v{PF+6}")
e(f"v_max_f32 v{PF}, v{PF}, v{PF+3}")
e(f"v_max_f32 v{PF+4}, v{PF+4}, v{PF+7}")
e(f"v_mul_f32 v{nMB}, s{cCB}, v{PF}")
e(f"v_mul_f32 v{nM}, s{cC}, v{PF+4}")
e(f"v_sub_f32 v{nMB}, 0, v{nMB}")
e(f"v_sub_f32 v{nM}, 0, v{nM}")
e("s_branch L_cpass")
lab("L_end")
e("s_endpgm")
out += ['.section .rodata,"a"', ".p2align 6", f".amdhsa_kernel {NAME}_kernel",
        "  .amdhsa_next_free_vgpr 256", "  .amdhsa_next_free_sgpr 64", "  .amdhsa_accum_offset 256",
        "  .amdhsa_group_segment_fixed_size 0", "  .amdhsa_kernarg_size 56", "  .amdhsa_user_sgpr_count 2",
        "  .amdhsa_user_sgpr_kernarg_segment_ptr 1", "  .amdhsa_system_sgpr_workgroup_id_x 1", ".end_amdhsa_kernel"]
open(sys.argv[1], "w").write("\n".join(out) + "\n")
```

```python
import sys
OPT = dict(dot=0, wm=0, noadd=0, nokr=0, w0=0, w1=0, pvm=8, pair=0, pwg=1, pf=99999, pfnt=0, pfb=0, rot=0, qb=9, vb=8, pwlate=0, pw64=0, nodma=0, nopw=0, pace=0, one=0, stamp=0, prio_l=0, prio_c=0, ntq=0, nto=0, ntkv=0)
for a in sys.argv[2:]:
    k, v = a.split('=')
    OPT[k] = int(v)

NAME = "standalone__block_sparse_attn__prompt"
PS = 1040
SLOT = 32 * PS
NSLOT = 4
P_OFF = NSLOT * SLOT
L_OFF = P_OFF + 8192
I_OFF = L_OFF + 1024
M_OFF = L_OFF + 2048
TS = 144
T_OFF = M_OFF + 2048
LDS_BYTES = T_OFF + 4*32*TS
CSCALE = 0x3DB8AA3B

out = []
def e(s): out.append("    " + s)
def lab(s): out.append(s + ":")
def cm(s): out.append("    ; " + s)

sQp, sKp, sVp, sMp, sOp, sDbg, sWs = 4, 6, 8, 10, 12, 14, 16
sW = 20
sWave, sIdx, sHA = 24, 25, 26
sMode = 27
sKm, sKb, sVm, sVb, sMA, sMB, sX, sSl, sSo, sT0, sT1, sT2, sQB, sKu, sVu, sEm, sM0w, sSt = range(28, 46)
sTm = 46
cT, cNA, cN, cCB, cC, cOA, cOB, cFail, cT0, cT1, cSpec, cOne, cQv, cEv, cXo, cXB, cTwo, cV0, cV1 = range(28, 47)

O = 0; Q = 64; S = 128; PO = 144; PF = 152; FB = 176
aK, sK, aKl, aQl, aV0, aV1, sV0, sV1, aV0l, aV1l, aPw, aP01, aP10, aP11, aLw, aLr0, aLr1, l0, l1, nMB, nM, mx, aO, aMw, aTw, aTr, t0, t1 = range(224, 252)
def vr(b, n): return f"v[{b}:{b+n-1}]"

class LDS:
    def __init__(s, init=()): s.q = list(init)
    def op(s, txt, tag): e(txt); s.q.append(tag)
    def need(s, *tags):
        idx = max([s.q.index(t) for t in tags if t in s.q], default=-1)
        if idx < 0: return
        n = len(s.q) - 1 - idx
        e(f"s_waitcnt lgkmcnt({min(n,15)})")
        s.q = s.q[idx+1:]
    def drain(s):
        e("s_waitcnt lgkmcnt(0)"); s.q = []

def kb(x): return FB + 4*((x + 8) % 12)
def rdK(L, x):
    if not OPT['nokr']: L.op(f"ds_read_b128 {vr(kb(x),4)}, v{aK} offset:{32*x}", f"K{x}")
def rdQ(L, x): L.op(f"ds_read_b128 {vr(Q+4*x,4)}, v{aK} offset:{32*x}", f"Q{x}")
def rdV(L, f, ee):
    u, dt = f >> 1, f & 1
    b, s = u >> 1, u & 1
    L.op(f"ds_read_b64_tr_b16 {vr(FB+4*f+2*ee,2)}, v{aV1 if b else aV0} offset:{(16*s+2*ee)*PS+64*dt}", f"V{f}_{ee}")
PFI = {(1,0):0, (1,1):1, (0,2):2, (1,2):3, (0,3):4, (1,3):5}
def preg(a, u): return PO + 4*u if (a == 0 and u < 2) else PF + 4*PFI[(a,u)]
def rdP(L, a, u):
    b, s = u >> 1, u & 1
    ar = {(0,1):aP01, (1,0):aP10, (1,1):aP11}[(a,b)]
    L.op(f"ds_read_b128 {vr(preg(a,u),4)}, v{ar} offset:{1024*s}", f"P{a}_{u}")
def do_rd(L, r):
    if r[0] == 'V': rdV(L, r[1], r[2])
    else: rdP(L, r[1], r[2])

QB = OPT['qb']
VB = OPT['vb']
VP = [('V',0,0),('V',0,1),('V',1,0),('V',1,1),('P',1,0),('V',2,0),('V',2,1),('V',3,0),('V',3,1),('P',1,1),
      ('V',4,0),('V',4,1),('V',5,0),('V',5,1),('P',0,2),('P',1,2),('V',6,0),('V',6,1),('V',7,0),('V',7,1),('P',0,3),('P',1,3)]
NQT = 3*(16-QB) - 1 if 3*(16-QB) - 1 < 20 else 20
NKT = 10
TAILQ = []
def phaseQ(skip):
    L = LDS([] if skip else list(TAILQ))
    def mf(x):
        if skip: return
        if x % 2 == 0: L.need(f"K{x}", f"K{x+1}")
        e(f"v_mfma_f32_32x32x16_bf16 {vr(S,16)}, {vr(kb(x),4)}, {vr(Q+4*x,4)}, {'0' if x==0 else vr(S,16)}")
    D = lambda k: f"v_dot2_f32_bf16 v{l1 if k&1 else l0}, v{PO+k}, s{cOne}, v{l1 if k&1 else l0}"
    val = {2:[D(0)], 3:[D(1)], 4:[D(2)], 5:[D(3),D(4)], 6:[D(5),D(6)], 7:[D(7), f"v_sub_u32 v{aV0}, v{sV0}, v{aV0}"],
           8:[f"v_sub_u32 v{aV1}, v{sV1}, v{aV1}", f"v_sub_u32 v{aK}, v{sK}, v{aK}"]}
    if OPT['w0'] and not OPT['dot']: val = {k: [o for o in v if 'dot2' not in o] for k, v in val.items()}
    kr = {0:[10,11], 3:[12,13], 4:[14,15]}
    vp = list(VP[:NQT])
    for g in range(16):
        mf(g)
        if g == OPT['pwg'] and not OPT['nopw'] and not OPT['w0']: L.op(f"ds_write_b128 v{aPw}, {vr(PO,4)}", "W0")
        if g == OPT['pwg']+1 and not OPT['nopw'] and not OPT['w0']: L.op(f"ds_write_b128 v{aPw}, {vr(PO+4,4)} offset:1024", "W1")
        if not skip:
            for x in kr.get(g, []): rdK(L, x)
        for o in val.get(g, []): e(o)
        if g == QB:
            L.drain()
            e("s_barrier")
        if g >= QB:
            for _ in range(3):
                if vp:
                    r = vp[0]
                    if r[0] == 'V' and g < r[1] + 4: break
                    do_rd(L, vp.pop(0))
        if g == 14: e(f"s_cmp_lg_u32 s{cSpec}, 0")
    assert not vp
    return L

def softmax_ops():
    F = lambda k: f"v_fma_f32 v{S+k}, v{S+k}, s{cC}, v{nM}"
    X = lambda k: f"v_exp_f32 v{S+k}, v{S+k}"
    C = lambda k: f"v_cvt_pk_bf16_f32 v{PO+k}, v{S+2*k}, v{S+2*k+1}"
    g = {i: [] for i in range(16)}
    g[1] = [F(0),F(1),F(2),F(3)]
    g[2] = [X(0),F(4),X(1),F(5)]
    g[3] = [X(2),F(6),X(3),F(7)]
    g[4] = [X(4),F(8),X(5),F(9)]
    g[5] = [X(6),F(10),X(7),F(11)]
    g[6] = [X(8),F(12),F(13),C(0),C(1)]
    g[7] = [X(9),F(14),F(15),C(2)]
    g[8] = [X(10),C(3)]
    g[9] = [X(11),C(4)]
    g[10] = [X(12)]
    g[11] = [X(13),C(5)]
    g[12] = [X(14)]
    g[13] = [X(15),C(6)]
    g[14] = [C(7)]
    if OPT['w0']:
        A = lambda k: f"v_add_f32 v{l1 if k&1 else l0}, v{S+k}, v{l1 if k&1 else l0}"
        g = {i: [] for i in range(16)}
        g[1] = [F(0),F(1),F(2),X(0),F(3)]
        for i in range(2, 8): g[i] = [X(2*i-3),F(2*i),X(2*i-2),F(2*i+1)]
        g[8] = [X(13),C(0),X(14),C(1)]
        g[9] = [X(15),C(2),C(3),C(4)]
        g[10] = [C(5),C(6),C(7)]
        for i in range(4): g[12+i if i else 11] = [A(4*i+k) for k in range(4)]
        g[12] = g[15]; g[15] = []
        if OPT['noadd'] or OPT['dot']:
            for i in range(11,16): g[i] = []
    return g

def mfV(L, m, first):
    u, a, dt = m >> 2, (m >> 1) & 1, m & 1
    f = 2*u + dt
    if dt == 0: L.need(f"V{f}_0", f"V{f}_1", f"V{f+1}_0", f"V{f+1}_1", f"P{a}_{u}")
    o = O + 16*(2*a+dt)
    e(f"v_mfma_f32_32x32x16_bf16 {vr(o,16)}, {vr(FB+4*f,4)}, {vr(preg(a,u),4)}, {'0' if first else vr(o,16)}")

def phaseV_head(L0, first, pre):
    L = LDS(L0.q); sm = softmax_ops()
    vp = list(VP[NQT:])
    n0 = len(out)
    for m in range(4):
        mfV(L, m, first)
        for _ in range(3 if m == 0 else 2):
            if vp: do_rd(L, vp.pop(0))
        if m == 0:
            e(f"s_add_u32 s{cT}, s{cT}, 1")
            have = len(out) - n0 + pre + 1
            if have < 12: e(f"s_nop {12-have-1}")
        for o in sm[m]: e(o)
    assert not vp
    return L
def phaseV_mid(L):
    sm = softmax_ops()
    for m in range(4, VB+1):
        mfV(L, m, False)
        if m == VB: break
        for o in sm[m]: e(o)
        if m == VB-1: e(f"s_cmp_eq_u32 s{cT}, s{cQv}")
    L.drain()
    e("s_barrier")
def phaseV_tail(qvar):
    L = LDS(); sm = softmax_ops()
    if qvar:
        e(f"v_add_u32 v{aK}, s{cXo}, v{aQl}")
    rd = list(range(16 if qvar else NKT))
    for m in range(VB, 16):
        if m > VB: mfV(L, m, False)
        wm = OPT['wm']
        def wr():
            if OPT['nopw'] or not OPT['w0']: return
            if wm < 2:
                if m == OPT['w0']: L.op(f"ds_write_b128 v{aPw}, {vr(PO,4)}", "W0")
                if m == OPT['w1']: L.op(f"ds_write_b128 v{aPw}, {vr(PO+4,4)} offset:1024", "W1")
            else:
                k = m - OPT['w0']
                if 0 <= k < 4: L.op(f"ds_write_b64 v{aPw}, {vr(PO+2*k,2)} offset:{1024*(k>>1)+8*(k&1)}", "W1" if k == 3 else f"Wx{k}")
        if wm == 0: wr()
        nr = (4 if VB > 10 else 3) if qvar else 2
        if wm == 1 and not qvar: nr = {11:3, 12:0, 13:4, 14:0, 15:3}[m]
        for _ in range(nr):
            if rd:
                x = rd[0]
                if not qvar and x >= 8 and m < 11: break
                (rdQ if qvar else rdK)(L, rd.pop(0))
        if wm: wr()
        for o in sm[m]: e(o)
        if m == 14 and not qvar: e(f"s_cmp_lg_u32 s{cT}, s{cEv}")
    assert not rd
    if not qvar: TAILQ[:] = L.q
    if qvar:
        L.op(f"ds_write_b32 v{aMw}, v{mx}", "WM")
        cm("x = slot of the Q tile: K next in x+1, V toggles from x")
        e(f"v_add_u32 v{aV0}, s{cXo}, v{aV0l}")
        e(f"v_add_u32 v{aV1}, s{cXo}, v{aV1l}")
        e(f"s_add_u32 s{cT0}, s{cXo}, {SLOT}")
        e(f"s_cmp_eq_u32 s{cT0}, {4*SLOT}")
        e(f"s_cselect_b32 s{cT0}, 0, s{cT0}")
        e(f"v_add_u32 v{aK}, s{cT0}, v{aKl}")
        e(f"s_cmp_eq_u32 s{cXo}, 0")
        e(f"s_cselect_b32 s{cT0}, {4*SLOT}, {2*SLOT}".replace(f", {2*SLOT}", f", s{cTwo}"))
        e(f"s_cselect_b32 s{cT1}, s{cTwo}, {4*SLOT}")
        e(f"v_lshl_add_u32 v{sK}, v{aKl}, 1, s{cT0}")
        e(f"v_lshl_add_u32 v{sV0}, v{aV0l}, 1, s{cT1}")
        e(f"v_lshl_add_u32 v{sV1}, v{aV1l}, 1, s{cT1}")
        e(f"s_mov_b32 s{cXo}, s{cXB}")
        e(f"v_xor_b32 v{aMw}, 0x400, v{aMw}")
        e(f"v_mov_b32 v{mx}, 0xff800000")
        cm("switch scale / reference to the next unit (swap)")
        e(f"s_mov_b32 s{cT0}, s{cC}")
        e(f"s_mov_b32 s{cC}, s{cCB}")
        e(f"s_mov_b32 s{cCB}, s{cT0}")
        e(f"v_swap_b32 v{nM}, v{nMB}")
        L.drain()
        e("s_barrier")
        for k in range(NKT): rdK(L, k)
        if "W1" in TAILQ and TAILQ.index("W1") > 1: e(f"s_waitcnt lgkmcnt({len(TAILQ)-1-TAILQ.index('W1')})")

def epilogue():
    e(f"ds_read_b128 {vr(PF,4)}, v{aLr0}")
    e(f"ds_read_b128 {vr(PF+4,4)}, v{aLr1}")
    e(f"s_mov_b32 s{cT0}, 0x30800000")
    e(f"s_mov_b32 s{cT1}, 0x1e000000")
    e("s_waitcnt lgkmcnt(0)")
    for a in range(2):
        b = PF + 4*a
        e(f"v_add_f32 v{b}, v{b}, v{b+1}")
        e(f"v_add_f32 v{b+2}, v{b+2}, v{b+3}")
    for a in range(2):
        b = PF + 4*a
        e(f"v_add_f32 v{b}, v{b}, v{b+2}")
    for a in range(2):
        b = PF + 4*a
        e(f"v_subrev_u32 v{b+1}, s{cT0}, v{b}")
        e(f"v_rcp_f32 v{b}, v{b}")
    e(f"v_max_u32 v{PF+1}, v{PF+1}, v{PF+5}")
    e(f"v_cmp_lt_u32 vcc, s{cT1}, v{PF+1}")
    e(f"s_or_b32 s{cFail}, s{cFail}, vcc_lo")
    nt = ["", " nt", " sc1", " sc0 sc1", " sc1 nt", " sc0 sc1 nt"][OPT['nto']]
    L = LDS()
    def conv(a, dt, g):
        o = O + 16*(2*a+dt) + 4*g; r = PF + 4*a
        for k in range(2): e(f"v_pk_mul_f32 {vr(o+2*k,2)}, {vr(o+2*k,2)}, {vr(r,2)} op_sel_hi:[1,0]")
        for k in range(2): e(f"v_cvt_pk_bf16_f32 v{o+k}, v{o+2*k}, v{o+2*k+1}")
    def wr(a, dt, g):
        o = O + 16*(2*a+dt) + 4*g
        L.op(f"ds_write_b64 v{aTw}, {vr(o,2)} offset:{64*dt+16*g}", f"w{a}{dt}{g}")
    def rd(a, k): L.op(f"ds_read_b128 {vr(PF+8+4*k if a == 0 else O+4*k,4)}, v{aTr} offset:{8*TS*k}", f"r{a}{k}")
    def st(a, k):
        L.need(f"r{a}{k}")
        e(f"s_add_u32 s{cT0}, s{cOA}, {4096*k}")
        e(f"buffer_store_dwordx4 {vr(PF+8+4*k if a == 0 else O+4*k,4)}, v{aO}, s[{sW}:{sW+3}], s{cT0} offen{nt}")
    for dt in range(2):
        for g in range(4): conv(0, dt, g); wr(0, dt, g)
    for k in range(4): rd(0, k)
    for dt in range(2):
        for g in range(4):
            conv(1, dt, g); wr(1, dt, g)
            if dt == 1: st(0, g)
    for k in range(4): rd(1, k)
    e(f"v_xor_b32 v{aO}, 0x4000, v{aO}")
    for k in range(4): st(1, k)
    e(f"v_xor_b32 v{aO}, 0x4000, v{aO}")
    e(f"s_mov_b32 s{cOA}, s{cOB}")

def stamp():
    if not OPT['stamp']: return
    e(f"s_memtime s[{sTm}:{sTm+1}]")
    e("s_waitcnt lgkmcnt(0)")
    e(f"s_mov_b32 m0, s{sSt}")
    e(f"s_min_u32 s{sSt}, s{sSt}, 124")
    e(f"s_add_u32 s{sSt}, s{sSt}, 1")
    e(f"s_cmp_ge_u32 m0, 64")
    lbl = f"L_st{len(out)}"
    e(f"s_cbranch_scc1 {lbl}a")
    e(f"v_writelane_b32 v40, s{sTm}, m0")
    e(f"s_branch {lbl}b")
    lab(lbl + "a")
    e(f"v_writelane_b32 v41, s{sTm}, m0")
    lab(lbl + "b")

phaseV_tail(False); out.clear()
hdr = open("cdna_kernels/" + NAME + ".s.ref").read().split("\n")
hdr = [h for h in hdr if h.startswith(";") and "@launch" not in h]
out += hdr
out.append(f"; @launch grid=(256,1,1) block=(512,1,1) lds={LDS_BYTES}")
out += ['.amdgcn_target "amdgcn-amd-amdhsa--gfx950"', ".text", f".globl {NAME}_kernel", ".p2align 8",
        f".type {NAME}_kernel,@function"]
lab(f"{NAME}_kernel")
e("s_cmp_ge_u32 s2, 256")
e("s_cbranch_scc1 L_end")
e("s_load_dwordx8 s[4:11], s[0:1], 0")
e("s_load_dwordx4 s[12:15], s[0:1], 32")
if OPT['stamp']: e("s_load_dwordx2 s[16:17], s[0:1], 48")
e(f"v_readfirstlane_b32 s{sWave}, v0")
e("v_and_b32 v0, 63, v0")
e(f"s_lshr_b32 s{sIdx}, s2, 3")
e(f"s_and_b32 s{sHA}, s2, 7")
e(f"s_lshl_b32 s{sHA}, s{sHA}, 21")
e(f"s_lshr_b32 s{sWave}, s{sWave}, 6")
e(f"s_mov_b32 s{sMode}, 0")
e(f"s_mov_b32 s{sW+3}, 0x20000")
e(f"s_cmp_lt_u32 s{sWave}, 4")
e("s_cbranch_scc1 L_compute")

cm("---------------- loader waves ----------------")
if OPT['prio_l']: e(f"s_setprio {OPT['prio_l']}")
e(f"s_sub_u32 s{sWave}, s{sWave}, 4")
e("v_and_b32 v1, 31, v0")
e("v_lshrrev_b32 v2, 5, v0")
e("v_lshlrev_b32 v3, 6, v1")
e("v_lshl_or_b32 v3, v2, 5, v3")
e("v_lshlrev_b32 v4, 4, v1")
e("v_lshl_or_b32 v4, v2, 14, v4")
e(f"s_lshr_b32 s{sT0}, s{sWave}, 1")
e(f"s_lshl_b32 s{sT0}, s{sT0}, 13")
e(f"s_and_b32 s{sT1}, s{sWave}, 1")
e(f"s_lshl_b32 s{sT1}, s{sT1}, 10")
e(f"s_add_u32 s{sT0}, s{sT0}, s{sT1}")
e(f"v_add_u32 v8, s{sT0}, v4")
for u in range(1, 8):
    e(f"v_add_u32 v{8+u}, {1008*(u&3) + 512*(u>>2)}, v8")
e(f"s_mul_i32 s{sM0w}, s{sWave}, {8*PS}")
if OPT['stamp']:
    e(f"s_mov_b32 s{sSt}, 0"); e("v_mov_b32 v40, 0"); e("v_mov_b32 v41, 0")
e("s_waitcnt lgkmcnt(0)")
if OPT['stamp']: e("s_memrealtime s[48:49]")
stamp()
e(f"s_mov_b64 s[{sW}:{sW+1}], s[{sMp}:{sMp+1}]")
e(f"s_mov_b32 s{sW+2}, 2048")
e(f"buffer_load_dwordx4 v[16:19], v3, s[{sW}:{sW+3}], 0 offen")
e(f"buffer_load_dwordx4 v[20:23], v3, s[{sW}:{sW+3}], 0 offen offset:16")
lab("L_lpass")
e(f"s_mov_b32 s{sW+2}, 0x1000000")
e(f"s_mov_b32 s{sX}, 0")
e(f"s_mov_b32 s{sSl}, s{sM0w}")
e(f"s_mov_b32 s{sKu}, 0")
e(f"s_mov_b32 s{sVu}, 0")
e(f"s_mov_b32 s{sKb}, s{sHA}")
e(f"s_mov_b32 s{sVb}, s{sHA}")
e(f"s_lshl_b32 s{sSo}, s{sIdx}, 15")
e(f"s_add_u32 s{sSo}, s{sSo}, s{sHA}")

def issue(ptr, nt):
    e(f"s_mov_b64 s[{sW}:{sW+1}], s[{ptr}:{ptr+1}]")
    e(f"s_mov_b32 m0, s{sSl}")
    e(f"s_add_u32 s{sT0}, s{sSl}, {4*PS}")
    for u in range(8):
        if u == 4:
            e(f"s_mov_b32 m0, s{sT0}")
            e(f"s_add_u32 s{sSl}, s{sSl}, {SLOT}")
        if OPT['nodma'] and u >= OPT['nodma'] - 1: continue
        e(f"buffer_load_dwordx4 v{8+u}, s[{sW}:{sW+3}], s{sSo} offen offset:{PS*(u&3)}{' nt' if nt else ''} lds")
        if OPT['pace'] and u < 7: e(f"s_sleep {OPT['pace']}")
    e(f"s_cmp_ge_u32 s{sSl}, {NSLOT*SLOT}")
    e(f"s_cselect_b32 s{sSl}, s{sM0w}, s{sSl}")
    if OPT['stamp'] == 2: stamp()
def pick(m, b):
    e(f"s_ff1_i32_b32 s{sT0}, s{m}")
    e(f"s_bitset0_b32 s{m}, s{sT0}")
    e(f"s_lshl_b32 s{sT0}, s{sT0}, 15")
    e(f"s_add_u32 s{sSo}, s{sT0}, s{b}")
def skipslot():
    e(f"s_add_u32 s{sSl}, s{sSl}, {SLOT}")
    e(f"s_cmp_ge_u32 s{sSl}, {NSLOT*SLOT}")
    e(f"s_cselect_b32 s{sSl}, s{sM0w}, s{sSl}")
nsync = [0]
def sync():
    k = nsync[0]; nsync[0] += 1
    e(f"s_add_u32 s{sX}, s{sX}, 1")
    e(f"s_cmp_lg_u32 s{sX}, 3")
    e(f"s_cbranch_scc1 L_sy{k}_n")
    e("s_waitcnt vmcnt(16)")
    stamp()
    e("s_barrier")
    stamp()
    e("s_waitcnt vmcnt(8)")
    lab(f"L_sy{k}_n")
    e("s_waitcnt vmcnt(16)")
    stamp()
    e("s_barrier")
    stamp()

issue(sQp, OPT['ntq'])
e(f"s_cmp_lg_u32 s{sMode}, 0")
e("s_cbranch_scc1 L_havemask")
cm("block mask -> one bit row per lane")
e(f"s_mov_b32 s{sT0}, 0x7f807f80")
e(f"s_mov_b32 s{sT1}, 0x000f000f")
e(f"s_mov_b32 s{sT2}, -1")
e("v_mov_b32 v5, 0")
e("s_waitcnt vmcnt(0)" if OPT['nodma'] else "s_waitcnt vmcnt(8)")
for k in range(8): e(f"v_pk_add_u16 v{16+k}, v{16+k}, s{sT2}")
for k in range(8): e(f"v_pk_min_u16 v{16+k}, v{16+k}, s{sT0}")
for k in range(8): e(f"v_pk_sub_u16 v{16+k}, v{16+k}, s{sT0}")
for k in range(8): e(f"v_pk_lshrrev_b16 v{16+k}, s{sT1}, v{16+k}")
for k in range(8): e(f"v_lshl_or_b32 v5, v{16+k}, {2*k}, v5")
e("v_lshrrev_b32 v6, 15, v5")
e("v_or_b32 v5, v5, v6")
e("v_and_b32 v5, 0xffff, v5")
e("v_mov_b32 v6, v5")
e("s_nop 1")
e("v_permlane32_swap_b32 v5, v6")
e("s_nop 0")
e("v_lshl_or_b32 v5, v6, 16, v5")
e("v_cmp_eq_u32 vcc, 0, v5")
e(f"s_mov_b32 s{sEm}, vcc_lo")
e("s_nop 0")
e("v_cndmask_b32 v5, v5, -1, vcc")
e("s_nop 0")
e(f"v_readlane_b32 s{sMA}, v5, s{sIdx}")
lab("L_havemask")
e(f"s_mov_b32 s{sKm}, s{sMA}")
e(f"s_mov_b32 s{sVm}, s{sMA}")
pick(sKm, sKb)
issue(sKp, OPT['ntkv'])
skipslot()
e(f"s_mov_b32 s{sX}, 2")
e(f"s_cmp_lg_u32 s{sMode}, 0")
e("s_cbranch_scc1 L_lloop")
cm("pair this q block with the one of opposite rank")
e("v_bcnt_u32_b32 v6, v5, 0")
e("v_lshl_or_b32 v6, v6, 5, v1")
e("s_nop 0")
e(f"v_readlane_b32 s{sT0}, v6, s{sIdx}")
e("s_nop 1")
e(f"v_cmp_ge_u32 vcc, s{sT0}, v6")
e(f"s_bcnt1_i32_b32 s{sT1}, vcc_lo")
e(f"s_mov_b32 s{sQB}, 0")
for b in range(10, -1, -1):
    e(f"s_or_b32 s{sT0}, s{sQB}, {1<<b}")
    e(f"v_cmp_le_u32 vcc, s{sT0}, v6")
    e(f"s_bcnt1_i32_b32 s{sT2}, vcc_lo")
    e(f"s_cmp_ge_u32 s{sT2}, s{sT1}")
    e(f"s_cselect_b32 s{sQB}, s{sT0}, s{sQB}")
e(f"s_and_b32 s{sQB}, s{sQB}, 31")
e(f"v_readlane_b32 s{sMB}, v5, s{sQB}")
e(f"s_bcnt1_i32_b32 s{sT0}, s{sMA}")
e(f"v_mov_b32 v16, s{sT0}")
e(f"s_bcnt1_i32_b32 s{sT0}, s{sMB}")
e(f"v_mov_b32 v17, s{sT0}")
e(f"v_mov_b32 v18, s{sQB}")
e(f"v_mov_b32 v19, s{sEm}")
e(f"v_mov_b32 v20, {I_OFF}")
e("ds_write_b128 v20, v[16:19]")
e("s_waitcnt lgkmcnt(0)")
lab("L_lloop")
e(f"s_cmp_lg_u32 s{sKm}, 0")
e("s_cbranch_scc1 L_lK")
e(f"s_cmp_lg_u32 s{sKu}, 0")
e("s_cbranch_scc1 L_lNoK")
e(f"s_mov_b32 s{sKu}, 1")
e(f"s_mov_b32 s{sKm}, s{sMB}")
e(f"s_add_u32 s{sKb}, s{sHA}, 0x100000")
e(f"s_lshl_b32 s{sSo}, s{sQB}, 15")
e(f"s_add_u32 s{sSo}, s{sSo}, s{sKb}")
issue(sQp, OPT['ntq']); sync()
lab("L_lK")
pick(sKm, sKb)
if OPT['pair']:
    e(f"s_cmp_lg_u32 s{sX}, 2")
    e("s_cbranch_scc1 L_lKp")
    issue(sKp, OPT['ntkv']); sync()
    e("s_branch L_lV")
    lab("L_lKp")
    e("s_waitcnt vmcnt(8)"); stamp()
    e("s_barrier"); stamp()
    if OPT['pvm'] < 8: e(f"s_waitcnt vmcnt({OPT['pvm']})")
    issue(sKp, OPT['ntkv'])
else:
    issue(sKp, OPT['ntkv']); sync()
lab("L_lV")
e(f"s_cmp_lg_u32 s{sVm}, 0")
e("s_cbranch_scc1 L_lV2")
e(f"s_mov_b32 s{sVu}, 1")
e(f"s_mov_b32 s{sVm}, s{sMB}")
e(f"s_add_u32 s{sVb}, s{sHA}, 0x100000")
lab("L_lV2")
pick(sVm, sVb)
issue(sVp, OPT['ntkv']); sync()
e("s_branch L_lloop")
lab("L_lNoK")
skipslot()
e("s_waitcnt vmcnt(8)"); stamp()
e("s_barrier"); stamp()
e(f"s_cmp_lg_u32 s{sVm}, 0")
e("s_cbranch_scc1 L_lV3")
e(f"s_mov_b32 s{sVm}, s{sMB}")
e(f"s_add_u32 s{sVb}, s{sHA}, 0x100000")
lab("L_lV3")
pick(sVm, sVb)
issue(sVp, OPT['ntkv'])
e("s_waitcnt vmcnt(8)"); stamp()
e("s_barrier"); stamp()
stamp()
e("s_barrier"); stamp()
e("s_waitcnt vmcnt(0)"); stamp()
e("s_barrier"); stamp()
stamp()
e("s_barrier"); stamp()
stamp()
e("s_barrier"); stamp()
if OPT['stamp']:
    e(f"s_cmp_lg_u32 s{sWave}, 0")
    e("s_cbranch_scc1 L_nost")
    e(f"s_mov_b64 s[{sW}:{sW+1}], s[{sWs}:{sWs+1}]")
    e(f"s_lshl_b32 s{sT0}, s2, 9")
    e("s_memrealtime s[50:51]")
    e("s_waitcnt lgkmcnt(0)")
    e("v_writelane_b32 v41, s48, 62")
    e("v_writelane_b32 v41, s50, 63")
    e("v_lshlrev_b32 v42, 2, v0")
    e(f"buffer_store_dword v40, v42, s[{sW}:{sW+3}], s{sT0} offen")
    e(f"buffer_store_dword v41, v42, s[{sW}:{sW+3}], s{sT0} offen offset:256")
    e("s_waitcnt vmcnt(0)")
    lab("L_nost")
e(f"v_mov_b32 v20, {I_OFF}")
e("ds_read_b32 v16, v20 offset:16")
e("s_waitcnt lgkmcnt(0)")
e(f"v_readfirstlane_b32 s{sMode}, v16")
e("s_nop 3")
e(f"s_cmp_lg_u32 s{sMode}, 0")
e("s_cbranch_scc1 L_lpass")
e("s_endpgm")

lab("L_compute")
if OPT['prio_c']: e(f"s_setprio {OPT['prio_c']}")
e(f"s_and_b32 s{cT0}, s{sWave}, 1")
e(f"s_lshr_b32 s{cT1}, s{sWave}, 1")
e("v_and_b32 v1, 31, v0")
e("v_lshrrev_b32 v2, 5, v0")
e("v_and_b32 v3, 3, v0")
e("v_bfe_u32 v4, v0, 2, 2")
e("v_and_b32 v5, 16, v0")
e("v_lshl_or_b32 v6, v3, 2, v4")
e("v_or_b32 v6, v6, v5")
e(f"v_mul_u32_u24 v6, {PS}, v6")
e("v_lshl_add_u32 v6, v2, 4, v6")
e(f"s_lshl_b32 s{cV0}, s{cT0}, 9")
e(f"s_lshl_b32 s{cV1}, s{cT1}, 9")
e(f"v_add_u32 v{aQl}, s{cV0}, v6")
e(f"v_add_u32 v{aKl}, s{cV1}, v6")
e("v_lshl_add_u32 v6, v4, 2, v2")
e(f"v_mul_u32_u24 v6, {PS}, v6")
e("v_lshl_add_u32 v6, v5, 1, v6")
e("v_lshl_add_u32 v6, v3, 3, v6")
e(f"s_lshl_b32 s{cV0}, s{sWave}, 7")
e(f"v_add_u32 v6, s{cV0}, v6")
e(f"v_add_u32 v{aV0l}, s{cV1}, v6")
e(f"s_xor_b32 s{cV1}, s{cV1}, 512")
e(f"v_add_u32 v{aV1l}, s{cV1}, v6")
e("v_lshlrev_b32 v6, 4, v0")
e(f"s_lshl_b32 s{cV0}, s{cT0}, 12")
e(f"s_lshl_b32 s{cV1}, s{cT1}, 11")
e(f"s_or_b32 s{cV0}, s{cV0}, s{cV1}")
for reg, x in ((aPw,0),(aP01,2048),(aP10,4096),(aP11,6144)):
    e(f"s_xor_b32 s{cV1}, s{cV0}, {x}")
    e(f"s_add_u32 s{cV1}, s{cV1}, {P_OFF}")
    e(f"v_add_u32 v{reg}, s{cV1}, v6")
e("v_lshlrev_b32 v6, 4, v1")
e(f"s_lshl_b32 s{cV0}, s{cT0}, 9")
e(f"s_add_u32 s{cV1}, s{cV0}, {L_OFF}")
e(f"v_add_u32 v{aLr0}, s{cV1}, v6")
e(f"v_xor_b32 v{aLr1}, 0x200, v{aLr0}")
e(f"v_lshl_add_u32 v{aLw}, v2, 2, v{aLr0}")
e(f"s_lshl_b32 s{cV1}, s{cT1}, 3")
e(f"v_add_u32 v{aLw}, s{cV1}, v{aLw}")
e(f"v_add_u32 v{aMw}, {M_OFF-L_OFF+1024}, v{aLw}")
e(f"s_mul_i32 s{cV0}, s{sWave}, {32*TS}")
e(f"s_add_u32 s{cV0}, s{cV0}, {T_OFF}")
e(f"v_mul_u32_u24 v6, {TS}, v1")
e("v_lshl_add_u32 v6, v2, 3, v6")
e(f"v_add_u32 v{aTw}, s{cV0}, v6")
e("v_lshrrev_b32 v7, 3, v0")
e("v_and_b32 v8, 7, v0")
e(f"v_mul_u32_u24 v6, {TS}, v7")
e("v_lshl_add_u32 v6, v8, 4, v6")
e(f"v_add_u32 v{aTr}, s{cV0}, v6")
e("v_lshlrev_b32 v6, 9, v7")
e("v_lshl_add_u32 v6, v8, 4, v6")
e(f"s_lshl_b32 s{cV0}, s{cT0}, 14")
e(f"s_lshl_b32 s{cV1}, s{sWave}, 7")
e(f"s_add_u32 s{cV0}, s{cV0}, s{cV1}")
e(f"v_add_u32 v{aO}, s{cV0}, v6")
e(f"v_mov_b32 v{nM}, 0")
e(f"v_mov_b32 v{nMB}, 0")
e(f"v_mov_b32 v{t1}, {I_OFF}")
e(f"s_mov_b32 s{cFail}, 0")
e(f"s_mov_b32 s{cOne}, 0x3f803f80")
e(f"s_mov_b32 s{cTwo}, {2*SLOT}")
e("s_waitcnt lgkmcnt(0)")
e(f"s_mov_b64 s[{sW}:{sW+1}], s[{sOp}:{sOp+1}]")
e(f"s_mov_b32 s{sW+2}, 0x1000000")
PFS = "%05d" % OPT['pf']
sPf, sPq, sPo, sPoq, vPf = 48, 52, 56, 57, 252
def pfs(stage):
    for j in range(5):
        if PFS[j] != str(stage): continue
        if j < 4:
            off = (j >> 1)*0x100000 + (j & 1)*0x80000
            e(f"s_add_u32 s{cV0}, s{sPo}, {off}")
            e(f"buffer_load_dword v{vPf+1}, v{vPf}, s[{sPf}:{sPf+3}], s{cV0} offen nt")
        else:
            e(f"buffer_load_dword v{vPf+1}, v{vPf}, s[{sPq}:{sPq+3}], s{sPoq} offen nt")
if PFS != "99999":
    cm("L2 warm-up: every workgroup of the XCD touches 1/32 of each K/V tile")
    e(f"v_lshlrev_b32 v{vPf}, 15, v7")
    e(f"v_lshl_or_b32 v{vPf}, v8, 7, v{vPf}")
    e(f"s_cmp_lt_u32 s{sWave}, 2")
    e(f"s_cselect_b64 s[{sPf}:{sPf+1}], s[{sKp}:{sKp+1}], s[{sVp}:{sVp+1}]")
    e(f"s_mov_b64 s[{sPf+2}:{sPf+3}], s[{sW+2}:{sW+3}]")
    e(f"s_mov_b64 s[{sPq}:{sPq+1}], s[{sQp}:{sQp+1}]")
    e(f"s_mov_b64 s[{sPq+2}:{sPq+3}], s[{sW+2}:{sW+3}]")
    e(f"s_lshl_b32 s{sPo}, s{sIdx}, 10")
    e(f"s_add_u32 s{sPo}, s{sPo}, s{sHA}")
    e(f"s_lshl_b32 s{sPoq}, s{sWave}, 18")
    e(f"s_add_u32 s{sPoq}, s{sPoq}, s{sPo}")
    e(f"s_add_u32 s{sPoq}, s{sPoq}, 0x100000")
    e(f"s_lshl_b32 s{cV0}, s{cT0}, 18")
    e(f"s_add_u32 s{sPo}, s{sPo}, s{cV0}")
pfs(0)
lab("L_cpass")
e("s_barrier")
pfs(1)
e(f"ds_read_b128 {vr(PF,4)}, v{t1}")
e(f"s_mov_b32 s{cXo}, 0")
e(f"s_mov_b32 s{cT}, -1")
e(f"s_lshl_b32 s{cOA}, s{sIdx}, 15")
e(f"s_add_u32 s{cOA}, s{cOA}, s{sHA}")
e("s_waitcnt lgkmcnt(0)")
e(f"v_readfirstlane_b32 s{cNA}, v{PF}")
e(f"v_readfirstlane_b32 s{cN}, v{PF+1}")
e(f"v_readfirstlane_b32 s{cOB}, v{PF+2}")
e(f"v_readfirstlane_b32 s{cT0}, v{PF+3}")
e("s_nop 3")
e(f"s_add_u32 s{cN}, s{cN}, s{cNA}")
e(f"s_bitcmp1_b32 s{cT0}, s{sIdx}")
e(f"s_cselect_b32 s{cCB}, 0, {CSCALE}")
e(f"s_bitcmp1_b32 s{cT0}, s{cOB}")
e(f"s_cselect_b32 s{cC}, 0, {CSCALE}")
e(f"s_lshl_b32 s{cOB}, s{cOB}, 15")
e(f"s_add_u32 s{cOB}, s{cOB}, s{sHA}")
e(f"s_add_u32 s{cOB}, s{cOB}, 0x100000")
e(f"s_sub_u32 s{cQv}, s{cNA}, 1")
e(f"s_bitcmp1_b32 s{cNA}, 0")
e(f"s_mov_b32 s{cXB}, {SLOT}")
e(f"s_cselect_b32 s{cXB}, {3*SLOT}, s{cXB}")
lab("L_vtailQ")
phaseV_tail(True)
e("s_branch L_event")

lab("L_qskip")
e(f"s_andn2_b32 s{cSpec}, s{cSpec}, 4")
LQ = phaseQ(True)
lab("L_vspec")
cm("rare work at the head of phase V; bits: 1 first block, 2 last block, 4 track max")
e(f"s_bitcmp1_b32 s{cSpec}, 1")
e("s_cbranch_scc0 L_vs1")
e(f"v_add_f32 v{t0}, v{l0}, v{l1}")
e(f"v_mov_b32 v{l0}, 0")
e(f"v_mov_b32 v{l1}, 0")
e(f"ds_write_b32 v{aLw}, v{t0}")
lab("L_vs1")
e(f"s_bitcmp1_b32 s{cSpec}, 2")
e("s_cbranch_scc0 L_vs2")
e("s_nop 7")
for k in range(8): e(f"v_max3_f32 v{mx}, v{S+2*k}, v{S+2*k+1}, v{mx}")
lab("L_vs2")
e(f"s_bitcmp1_b32 s{cSpec}, 0")
e(f"s_cbranch_scc1 L_vfirst")
e(f"s_and_b32 s{cSpec}, s{cSpec}, 4")
e("s_branch L_vnorm")
lab("L_vfirst")
e(f"s_and_b32 s{cSpec}, s{cSpec}, 4")
phaseV_head(LQ, True, 8)
e("s_branch L_vmid")

out.append(".p2align 6")
lab("L_q")
n0 = len(out)
LQ2 = phaseQ(False)
assert LQ2.q == LQ.q, (LQ.q, LQ2.q)
e("s_cbranch_scc1 L_vspec")
pre = 0
while "v_mfma" not in out[-1-pre]: pre += 1
lab("L_vnorm")
LV = phaseV_head(LQ, False, pre)
lab("L_vmid")
phaseV_mid(LV)
e("s_cbranch_scc1 L_vtailQ")
phaseV_tail(False)
e("s_cbranch_scc1 L_q")
lab("L_event")
cm("t = index of the coming iteration")
e(f"s_cmp_eq_u32 s{cT}, s{cNA}")
e("s_cbranch_scc1 L_epi")
e(f"s_cmp_eq_u32 s{cT}, s{cN}")
e("s_cbranch_scc0 L_next")
lab("L_epi")
epilogue()
e(f"s_cmp_eq_u32 s{cT}, s{cN}")
e("s_cbranch_scc1 L_done")
lab("L_next")
for st_, tv in ((2, -1), (3, 0)):
    if str(st_) in PFS:
        e(f"s_cmp_lg_u32 s{cT}, {tv}")
        e(f"s_cbranch_scc1 L_npf{st_}")
        pfs(st_)
        lab(f"L_npf{st_}")
e(f"s_cmp_eq_u32 s{sMode}, 1")
e(f"s_cselect_b32 s{cSpec}, 4, 0")
e(f"s_cmp_eq_u32 s{cT}, 0")
e(f"s_addc_u32 s{cSpec}, s{cSpec}, 0")
e(f"s_cmp_eq_u32 s{cT}, s{cNA}")
e(f"s_addc_u32 s{cSpec}, s{cSpec}, 0")
e(f"s_add_u32 s{cT1}, s{cT}, 1")
e(f"s_sub_u32 s{cEv}, s{cN}, 1")
e(f"s_cmp_eq_u32 s{cT1}, 0")
e("s_cbranch_scc1 L_last")
e(f"s_cmp_eq_u32 s{cT1}, s{cNA}")
e("s_cbranch_scc1 L_last")
e(f"s_cmp_lg_u32 s{cT1}, s{cN}")
e("s_cbranch_scc1 L_q")
lab("L_last")
e(f"s_or_b32 s{cSpec}, s{cSpec}, 2")
e(f"s_mov_b32 s{cEv}, s{cT1}")
e(f"s_cmp_lg_u32 s{cT1}, s{cN}")
e("s_cbranch_scc1 L_q")
e("s_branch L_qskip")
lab("L_done")
cm("pass control: 0 optimistic -> (range check failed) 1 true max -> 2 final")
if OPT['nodma'] or OPT['nopw']: e(f"s_mov_b32 s{cFail}, 0")
e(f"s_cmp_lg_u32 s{cFail}, 0")
e(f"s_cselect_b32 s{cT0}, 1, 0")
e(f"s_cmp_eq_u32 s{sMode}, 1")
e(f"s_cselect_b32 s{cT0}, 2, s{cT0}")
e(f"s_cmp_eq_u32 s{sMode}, 2")
e(f"s_cselect_b32 s{sMode}, 0, s{cT0}")
e(f"v_mov_b32 v{t0}, s{sMode}")
e(f"ds_write_b32 v{t1}, v{t0} offset:16")
e(f"ds_write_b32 v{aMw}, v{mx}")
e("s_waitcnt lgkmcnt(0)")
e("s_barrier")
e(f"s_cmp_eq_u32 s{sMode}, 0")
e("s_cbranch_scc1 L_end")
e("s_waitcnt vmcnt(0)")
e(f"s_cmp_eq_u32 s{sMode}, 1")
e("s_cbranch_scc1 L_cpass")
e(f"ds_read_b128 {vr(PF,4)}, v{aLr0} offset:{M_OFF-L_OFF}")
e(f"ds_read_b128 {vr(PF+4,4)}, v{aLr0} offset:{M_OFF-L_OFF+1024}")
e("s_waitcnt lgkmcnt(0)")
e(f"v_max3_f32 v{PF}, v{PF}, v{PF+1}, v{PF+2}")
e(f"v_max3_f32 v{PF+4}, v{PF+4}, v{PF+5}, v{PF+6}")
e(f"v_max_f32 v{PF}, v{PF}, v{PF+3}")
e(f"v_max_f32 v{PF+4}, v{PF+4}, v{PF+7}")
e(f"v_mul_f32 v{nMB}, s{cCB}, v{PF}")
e(f"v_mul_f32 v{nM}, s{cC}, v{PF+4}")
e(f"v_sub_f32 v{nMB}, 0, v{nMB}")
e(f"v_sub_f32 v{nM}, 0, v{nM}")
e("s_branch L_cpass")
lab("L_end")
e("s_endpgm")
out += ['.section .rodata,"a"', ".p2align 6", f".amdhsa_kernel {NAME}_kernel",
        "  .amdhsa_next_free_vgpr 256", "  .amdhsa_next_free_sgpr 64", "  .amdhsa_accum_offset 256",
        "  .amdhsa_group_segment_fixed_size 0", "  .amdhsa_kernarg_size 56", "  .amdhsa_user_sgpr_count 2",
        "  .amdhsa_user_sgpr_kernarg_segment_ptr 1", "  .amdhsa_system_sgpr_workgroup_id_x 1", ".end_amdhsa_kernel"]
open(sys.argv[1], "w").write("\n".join(out) + "\n")
```

```python
import sys
OPT = dict(noloc=0, dot=0, wm=0, noadd=0, nokr=0, w0=0, w1=0, pvm=8, pair=0, pwg=1, pf=99999, pfnt=0, pfb=0, rot=0, qb=9, vb=8, pwlate=0, pw64=0, nodma=0, nopw=0, pace=0, one=0, stamp=0, prio_l=0, prio_c=0, ntq=0, nto=0, ntkv=0)
for a in sys.argv[2:]:
    k, v = a.split('=')
    OPT[k] = int(v)

NAME = "standalone__block_sparse_attn__prompt"
PS = 1040
SLOT = 32 * PS
NSLOT = 4
P_OFF = NSLOT * SLOT
L_OFF = P_OFF + 8192
I_OFF = L_OFF + 1024
M_OFF = L_OFF + 2048
TS = 144
T_OFF = M_OFF + 2048
LDS_BYTES = T_OFF + 4*32*TS
CSCALE = 0x3DB8AA3B

out = []
def e(s): out.append("    " + s)
def lab(s): out.append(s + ":")
def cm(s): out.append("    ; " + s)

sQp, sKp, sVp, sMp, sOp, sDbg, sWs = 4, 6, 8, 10, 12, 14, 16
sW = 20
sWave, sIdx, sHA = 24, 25, 26
sMode = 27
sKm, sKb, sVm, sVb, sMA, sMB, sX, sSl, sSo, sT0, sT1, sT2, sQB, sKu, sVu, sEm, sM0w, sSt = range(28, 46)
sTm = 46
cT, cNA, cN, cCB, cC, cOA, cOB, cFail, cT0, cT1, cSpec, cOne, cQv, cEv, cXo, cXB, cTwo, cV0, cV1 = range(28, 47)

O = 0; Q = 64; S = 128; PO = 144; PF = 152; FB = 176
aK, sK, aKl, aQl, aV0, aV1, sV0, sV1, aV0l, aV1l, aPw, aP01, aP10, aP11, aLw, aLr0, aLr1, l0, l1, nMB, nM, mx, aO, aMw, aTw, aTr, t0, t1 = range(224, 252)
def vr(b, n): return f"v[{b}:{b+n-1}]"

class LDS:
    def __init__(s, init=()): s.q = list(init)
    def op(s, txt, tag): e(txt); s.q.append(tag)
    def need(s, *tags):
        idx = max([s.q.index(t) for t in tags if t in s.q], default=-1)
        if idx < 0: return
        n = len(s.q) - 1 - idx
        e(f"s_waitcnt lgkmcnt({min(n,15)})")
        s.q = s.q[idx+1:]
    def drain(s):
        e("s_waitcnt lgkmcnt(0)"); s.q = []

def kb(x): return FB + 4*((x + 8) % 12)
def rdK(L, x):
    if not OPT['nokr']: L.op(f"ds_read_b128 {vr(kb(x),4)}, v{aK} offset:{32*x}", f"K{x}")
def rdQ(L, x): L.op(f"ds_read_b128 {vr(Q+4*x,4)}, v{aK} offset:{32*x}", f"Q{x}")
def rdV(L, f, ee):
    u, dt = f >> 1, f & 1
    b, s = u >> 1, u & 1
    L.op(f"ds_read_b64_tr_b16 {vr(FB+4*f+2*ee,2)}, v{aV1 if b else aV0} offset:{(16*s+2*ee)*PS+64*dt}", f"V{f}_{ee}")
PFI = {(1,0):0, (1,1):1, (0,2):2, (1,2):3, (0,3):4, (1,3):5}
def preg(a, u): return PO + 4*u if (a == 0 and u < 2) else PF + 4*PFI[(a,u)]
def rdP(L, a, u):
    b, s = u >> 1, u & 1
    ar = {(0,1):aP01, (1,0):aP10, (1,1):aP11}[(a,b)]
    L.op(f"ds_read_b128 {vr(preg(a,u),4)}, v{ar} offset:{1024*s}", f"P{a}_{u}")
def do_rd(L, r):
    if r[0] == 'V': rdV(L, r[1], r[2])
    else: rdP(L, r[1], r[2])

QB = OPT['qb']
VB = OPT['vb']
VP = [('V',0,0),('V',0,1),('V',1,0),('V',1,1),('P',1,0),('V',2,0),('V',2,1),('V',3,0),('V',3,1),('P',1,1),
      ('V',4,0),('V',4,1),('V',5,0),('V',5,1),('P',0,2),('P',1,2),('V',6,0),('V',6,1),('V',7,0),('V',7,1),('P',0,3),('P',1,3)]
NQT = 3*(16-QB) - 1 if 3*(16-QB) - 1 < 20 else 20
NKT = 10
TAILQ = []
def phaseQ(skip):
    L = LDS([] if skip else list(TAILQ))
    def mf(x):
        if skip: return
        if x % 2 == 0: L.need(f"K{x}", f"K{x+1}")
        e(f"v_mfma_f32_32x32x16_bf16 {vr(S,16)}, {vr(kb(x),4)}, {vr(Q+4*x,4)}, {'0' if x==0 else vr(S,16)}")
    D = lambda k: f"v_dot2_f32_bf16 v{l1 if k&1 else l0}, v{PO+k}, s{cOne}, v{l1 if k&1 else l0}"
    val = {2:[D(0)], 3:[D(1)], 4:[D(2)], 5:[D(3),D(4)], 6:[D(5),D(6)], 7:[D(7), f"v_sub_u32 v{aV0}, v{sV0}, v{aV0}"],
           8:[f"v_sub_u32 v{aV1}, v{sV1}, v{aV1}", f"v_sub_u32 v{aK}, v{sK}, v{aK}"]}
    if OPT['w0'] and not OPT['dot']: val = {k: [o for o in v if 'dot2' not in o] for k, v in val.items()}
    kr = {0:[10,11], 3:[12,13], 4:[14,15]}
    vp = list(VP[:NQT])
    for g in range(16):
        mf(g)
        if g == OPT['pwg'] and not OPT['nopw'] and not OPT['w0']: L.op(f"ds_write_b128 v{aPw}, {vr(PO,4)}", "W0")
        if g == OPT['pwg']+1 and not OPT['nopw'] and not OPT['w0']: L.op(f"ds_write_b128 v{aPw}, {vr(PO+4,4)} offset:1024", "W1")
        if not skip:
            for x in kr.get(g, []): rdK(L, x)
        for o in val.get(g, []): e(o)
        if g == QB:
            L.drain()
            e("s_barrier")
        if g >= QB:
            for _ in range(3):
                if vp:
                    r = vp[0]
                    if r[0] == 'V' and g < r[1] + 4: break
                    do_rd(L, vp.pop(0))
        if g == 14: e(f"s_cmp_lg_u32 s{cSpec}, 0")
    assert not vp
    return L

def softmax_ops():
    F = lambda k: f"v_fma_f32 v{S+k}, v{S+k}, s{cC}, v{nM}"
    X = lambda k: f"v_exp_f32 v{S+k}, v{S+k}"
    C = lambda k: f"v_cvt_pk_bf16_f32 v{PO+k}, v{S+2*k}, v{S+2*k+1}"
    g = {i: [] for i in range(16)}
    g[1] = [F(0),F(1),F(2),F(3)]
    g[2] = [X(0),F(4),X(1),F(5)]
    g[3] = [X(2),F(6),X(3),F(7)]
    g[4] = [X(4),F(8),X(5),F(9)]
    g[5] = [X(6),F(10),X(7),F(11)]
    g[6] = [X(8),F(12),F(13),C(0),C(1)]
    g[7] = [X(9),F(14),F(15),C(2)]
    g[8] = [X(10),C(3)]
    g[9] = [X(11),C(4)]
    g[10] = [X(12)]
    g[11] = [X(13),C(5)]
    g[12] = [X(14)]
    g[13] = [X(15),C(6)]
    g[14] = [C(7)]
    if OPT['w0']:
        A = lambda k: f"v_add_f32 v{l1 if k&1 else l0}, v{S+k}, v{l1 if k&1 else l0}"
        g = {i: [] for i in range(16)}
        g[1] = [F(0),F(1),F(2),X(0),F(3)]
        for i in range(2, 8): g[i] = [X(2*i-3),F(2*i),X(2*i-2),F(2*i+1)]
        g[8] = [X(13),C(0),X(14),C(1)]
        g[9] = [X(15),C(2),C(3),C(4)]
        g[10] = [C(5),C(6),C(7)]
        for i in range(4): g[12+i if i else 11] = [A(4*i+k) for k in range(4)]
        g[12] = g[15]; g[15] = []
        if OPT['noadd'] or OPT['dot']:
            for i in range(11,16): g[i] = []
    return g

def mfV(L, m, first):
    u, a, dt = m >> 2, (m >> 1) & 1, m & 1
    f = 2*u + dt
    if dt == 0: L.need(f"V{f}_0", f"V{f}_1", f"V{f+1}_0", f"V{f+1}_1", f"P{a}_{u}")
    o = O + 16*(2*a+dt)
    e(f"v_mfma_f32_32x32x16_bf16 {vr(o,16)}, {vr(FB+4*f,4)}, {vr(preg(a,u),4)}, {'0' if first else vr(o,16)}")

def phaseV_head(L0, first, pre):
    L = LDS(L0.q); sm = softmax_ops()
    vp = list(VP[NQT:])
    n0 = len(out)
    for m in range(4):
        mfV(L, m, first)
        for _ in range(3 if m == 0 else 2):
            if vp: do_rd(L, vp.pop(0))
        if m == 0:
            e(f"s_add_u32 s{cT}, s{cT}, 1")
            have = len(out) - n0 + pre + 1
            if have < 12: e(f"s_nop {12-have-1}")
        for o in sm[m]: e(o)
    assert not vp
    return L
def phaseV_mid(L):
    sm = softmax_ops()
    for m in range(4, VB+1):
        mfV(L, m, False)
        if m == VB: break
        for o in sm[m]: e(o)
        if m == VB-1: e(f"s_cmp_eq_u32 s{cT}, s{cQv}")
    L.drain()
    e("s_barrier")
def phaseV_tail(qvar):
    L = LDS(); sm = softmax_ops()
    if qvar:
        e(f"v_add_u32 v{aK}, s{cXo}, v{aQl}")
    rd = list(range(16 if qvar else NKT))
    for m in range(VB, 16):
        if m > VB: mfV(L, m, False)
        wm = OPT['wm']
        def wr():
            if OPT['nopw'] or not OPT['w0']: return
            if wm < 2:
                if m == OPT['w0']: L.op(f"ds_write_b128 v{aPw}, {vr(PO,4)}", "W0")
                if m == OPT['w1']: L.op(f"ds_write_b128 v{aPw}, {vr(PO+4,4)} offset:1024", "W1")
            else:
                k = m - OPT['w0']
                if 0 <= k < 4: L.op(f"ds_write_b64 v{aPw}, {vr(PO+2*k,2)} offset:{1024*(k>>1)+8*(k&1)}", "W1" if k == 3 else f"Wx{k}")
        if wm == 0: wr()
        nr = (4 if VB > 10 else 3) if qvar else 2
        if wm == 1 and not qvar: nr = {11:3, 12:0, 13:4, 14:0, 15:3}[m]
        for _ in range(nr):
            if rd:
                x = rd[0]
                if not qvar and x >= 8 and m < 11: break
                (rdQ if qvar else rdK)(L, rd.pop(0))
        if wm: wr()
        for o in sm[m]: e(o)
        if m == 14 and not qvar: e(f"s_cmp_lg_u32 s{cT}, s{cEv}")
    assert not rd
    if not qvar: TAILQ[:] = L.q
    if qvar:
        L.op(f"ds_write_b32 v{aMw}, v{mx}", "WM")
        cm("x = slot of the Q tile: K next in x+1, V toggles from x")
        e(f"v_add_u32 v{aV0}, s{cXo}, v{aV0l}")
        e(f"v_add_u32 v{aV1}, s{cXo}, v{aV1l}")
        e(f"s_add_u32 s{cT0}, s{cXo}, {SLOT}")
        e(f"s_cmp_eq_u32 s{cT0}, {4*SLOT}")
        e(f"s_cselect_b32 s{cT0}, 0, s{cT0}")
        e(f"v_add_u32 v{aK}, s{cT0}, v{aKl}")
        e(f"s_cmp_eq_u32 s{cXo}, 0")
        e(f"s_cselect_b32 s{cT0}, {4*SLOT}, {2*SLOT}".replace(f", {2*SLOT}", f", s{cTwo}"))
        e(f"s_cselect_b32 s{cT1}, s{cTwo}, {4*SLOT}")
        e(f"v_lshl_add_u32 v{sK}, v{aKl}, 1, s{cT0}")
        e(f"v_lshl_add_u32 v{sV0}, v{aV0l}, 1, s{cT1}")
        e(f"v_lshl_add_u32 v{sV1}, v{aV1l}, 1, s{cT1}")
        e(f"s_mov_b32 s{cXo}, s{cXB}")
        e(f"v_xor_b32 v{aMw}, 0x400, v{aMw}")
        e(f"v_mov_b32 v{mx}, 0xff800000")
        cm("switch scale / reference to the next unit (swap)")
        e(f"s_mov_b32 s{cT0}, s{cC}")
        e(f"s_mov_b32 s{cC}, s{cCB}")
        e(f"s_mov_b32 s{cCB}, s{cT0}")
        e(f"v_swap_b32 v{nM}, v{nMB}")
        L.drain()
        e("s_barrier")
        for k in range(NKT): rdK(L, k)
        if "W1" in TAILQ and TAILQ.index("W1") > 1: e(f"s_waitcnt lgkmcnt({len(TAILQ)-1-TAILQ.index('W1')})")

def epilogue():
    e(f"ds_read_b128 {vr(PF,4)}, v{aLr0}")
    e(f"ds_read_b128 {vr(PF+4,4)}, v{aLr1}")
    e(f"s_mov_b32 s{cT0}, 0x30800000")
    e(f"s_mov_b32 s{cT1}, 0x1e000000")
    e("s_waitcnt lgkmcnt(0)")
    for a in range(2):
        b = PF + 4*a
        e(f"v_add_f32 v{b}, v{b}, v{b+1}")
        e(f"v_add_f32 v{b+2}, v{b+2}, v{b+3}")
    for a in range(2):
        b = PF + 4*a
        e(f"v_add_f32 v{b}, v{b}, v{b+2}")
    for a in range(2):
        b = PF + 4*a
        e(f"v_subrev_u32 v{b+1}, s{cT0}, v{b}")
        e(f"v_rcp_f32 v{b}, v{b}")
    e(f"v_max_u32 v{PF+1}, v{PF+1}, v{PF+5}")
    e(f"v_cmp_lt_u32 vcc, s{cT1}, v{PF+1}")
    e(f"s_or_b32 s{cFail}, s{cFail}, vcc_lo")
    nt = ["", " nt", " sc1", " sc0 sc1", " sc1 nt", " sc0 sc1 nt"][OPT['nto']]
    L = LDS()
    def conv(a, dt, g):
        o = O + 16*(2*a+dt) + 4*g; r = PF + 4*a
        for k in range(2): e(f"v_pk_mul_f32 {vr(o+2*k,2)}, {vr(o+2*k,2)}, {vr(r,2)} op_sel_hi:[1,0]")
        for k in range(2): e(f"v_cvt_pk_bf16_f32 v{o+k}, v{o+2*k}, v{o+2*k+1}")
    def wr(a, dt, g):
        o = O + 16*(2*a+dt) + 4*g
        L.op(f"ds_write_b64 v{aTw}, {vr(o,2)} offset:{64*dt+16*g}", f"w{a}{dt}{g}")
    def rd(a, k): L.op(f"ds_read_b128 {vr(PF+8+4*k if a == 0 else O+4*k,4)}, v{aTr} offset:{8*TS*k}", f"r{a}{k}")
    def st(a, k):
        L.need(f"r{a}{k}")
        e(f"s_add_u32 s{cT0}, s{cOA}, {4096*k}")
        e(f"buffer_store_dwordx4 {vr(PF+8+4*k if a == 0 else O+4*k,4)}, v{aO}, s[{sW}:{sW+3}], s{cT0} offen{nt}")
    for dt in range(2):
        for g in range(4): conv(0, dt, g); wr(0, dt, g)
    for k in range(4): rd(0, k)
    for dt in range(2):
        for g in range(4):
            conv(1, dt, g); wr(1, dt, g)
            if dt == 1: st(0, g)
    for k in range(4): rd(1, k)
    e(f"v_xor_b32 v{aO}, 0x4000, v{aO}")
    for k in range(4): st(1, k)
    e(f"v_xor_b32 v{aO}, 0x4000, v{aO}")
    e(f"s_mov_b32 s{cOA}, s{cOB}")

def stamp():
    if not OPT['stamp']: return
    e(f"s_memtime s[{sTm}:{sTm+1}]")
    e("s_waitcnt lgkmcnt(0)")
    e(f"s_mov_b32 m0, s{sSt}")
    e(f"s_min_u32 s{sSt}, s{sSt}, 124")
    e(f"s_add_u32 s{sSt}, s{sSt}, 1")
    e(f"s_cmp_ge_u32 m0, 64")
    lbl = f"L_st{len(out)}"
    e(f"s_cbranch_scc1 {lbl}a")
    e(f"v_writelane_b32 v40, s{sTm}, m0")
    e(f"s_branch {lbl}b")
    lab(lbl + "a")
    e(f"v_writelane_b32 v41, s{sTm}, m0")
    lab(lbl + "b")

phaseV_tail(False); out.clear()
hdr = open("cdna_kernels/" + NAME + ".s.ref").read().split("\n")
hdr = [h for h in hdr if h.startswith(";") and "@launch" not in h]
out += hdr
out.append(f"; @launch grid=(256,1,1) block=(512,1,1) lds={LDS_BYTES}")
out += ['.amdgcn_target "amdgcn-amd-amdhsa--gfx950"', ".text", f".globl {NAME}_kernel", ".p2align 8",
        f".type {NAME}_kernel,@function"]
lab(f"{NAME}_kernel")
e("s_cmp_ge_u32 s2, 256")
e("s_cbranch_scc1 L_end")
e("s_load_dwordx8 s[4:11], s[0:1], 0")
e("s_load_dwordx4 s[12:15], s[0:1], 32")
if OPT['stamp']: e("s_load_dwordx2 s[16:17], s[0:1], 48")
e(f"v_readfirstlane_b32 s{sWave}, v0")
e("v_and_b32 v0, 63, v0")
if OPT['noloc']:
    e(f"s_and_b32 s{sIdx}, s2, 31")
    e(f"s_lshr_b32 s{sHA}, s2, 5")
else:
    e(f"s_lshr_b32 s{sIdx}, s2, 3")
    e(f"s_and_b32 s{sHA}, s2, 7")
e(f"s_lshl_b32 s{sHA}, s{sHA}, 21")
e(f"s_lshr_b32 s{sWave}, s{sWave}, 6")
e(f"s_mov_b32 s{sMode}, 0")
e(f"s_mov_b32 s{sW+3}, 0x20000")
e(f"s_cmp_lt_u32 s{sWave}, 4")
e("s_cbranch_scc1 L_compute")

cm("---------------- loader waves ----------------")
if OPT['prio_l']: e(f"s_setprio {OPT['prio_l']}")
e(f"s_sub_u32 s{sWave}, s{sWave}, 4")
e("v_and_b32 v1, 31, v0")
e("v_lshrrev_b32 v2, 5, v0")
e("v_lshlrev_b32 v3, 6, v1")
e("v_lshl_or_b32 v3, v2, 5, v3")
e("v_lshlrev_b32 v4, 4, v1")
e("v_lshl_or_b32 v4, v2, 14, v4")
e(f"s_lshr_b32 s{sT0}, s{sWave}, 1")
e(f"s_lshl_b32 s{sT0}, s{sT0}, 13")
e(f"s_and_b32 s{sT1}, s{sWave}, 1")
e(f"s_lshl_b32 s{sT1}, s{sT1}, 10")
e(f"s_add_u32 s{sT0}, s{sT0}, s{sT1}")
e(f"v_add_u32 v8, s{sT0}, v4")
for u in range(1, 8):
    e(f"v_add_u32 v{8+u}, {1008*(u&3) + 512*(u>>2)}, v8")
e(f"s_mul_i32 s{sM0w}, s{sWave}, {8*PS}")
if OPT['stamp']:
    e(f"s_mov_b32 s{sSt}, 0"); e("v_mov_b32 v40, 0"); e("v_mov_b32 v41, 0")
e("s_waitcnt lgkmcnt(0)")
if OPT['stamp']: e("s_memrealtime s[48:49]")
stamp()
e(f"s_mov_b64 s[{sW}:{sW+1}], s[{sMp}:{sMp+1}]")
e(f"s_mov_b32 s{sW+2}, 2048")
e(f"buffer_load_dwordx4 v[16:19], v3, s[{sW}:{sW+3}], 0 offen")
e(f"buffer_load_dwordx4 v[20:23], v3, s[{sW}:{sW+3}], 0 offen offset:16")
lab("L_lpass")
e(f"s_mov_b32 s{sW+2}, 0x1000000")
e(f"s_mov_b32 s{sX}, 0")
e(f"s_mov_b32 s{sSl}, s{sM0w}")
e(f"s_mov_b32 s{sKu}, 0")
e(f"s_mov_b32 s{sVu}, 0")
e(f"s_mov_b32 s{sKb}, s{sHA}")
e(f"s_mov_b32 s{sVb}, s{sHA}")
e(f"s_lshl_b32 s{sSo}, s{sIdx}, 15")
e(f"s_add_u32 s{sSo}, s{sSo}, s{sHA}")

def issue(ptr, nt):
    e(f"s_mov_b64 s[{sW}:{sW+1}], s[{ptr}:{ptr+1}]")
    e(f"s_mov_b32 m0, s{sSl}")
    e(f"s_add_u32 s{sT0}, s{sSl}, {4*PS}")
    for u in range(8):
        if u == 4:
            e(f"s_mov_b32 m0, s{sT0}")
            e(f"s_add_u32 s{sSl}, s{sSl}, {SLOT}")
        if OPT['nodma'] and u >= OPT['nodma'] - 1: continue
        e(f"buffer_load_dwordx4 v{8+u}, s[{sW}:{sW+3}], s{sSo} offen offset:{PS*(u&3)}{' nt' if nt else ''} lds")
        if OPT['pace'] and u < 7: e(f"s_sleep {OPT['pace']}")
    e(f"s_cmp_ge_u32 s{sSl}, {NSLOT*SLOT}")
    e(f"s_cselect_b32 s{sSl}, s{sM0w}, s{sSl}")
    if OPT['stamp'] == 2: stamp()
def pick(m, b):
    e(f"s_ff1_i32_b32 s{sT0}, s{m}")
    e(f"s_bitset0_b32 s{m}, s{sT0}")
    e(f"s_lshl_b32 s{sT0}, s{sT0}, 15")
    e(f"s_add_u32 s{sSo}, s{sT0}, s{b}")
def skipslot():
    e(f"s_add_u32 s{sSl}, s{sSl}, {SLOT}")
    e(f"s_cmp_ge_u32 s{sSl}, {NSLOT*SLOT}")
    e(f"s_cselect_b32 s{sSl}, s{sM0w}, s{sSl}")
nsync = [0]
def sync():
    k = nsync[0]; nsync[0] += 1
    e(f"s_add_u32 s{sX}, s{sX}, 1")
    e(f"s_cmp_lg_u32 s{sX}, 3")
    e(f"s_cbranch_scc1 L_sy{k}_n")
    e("s_waitcnt vmcnt(16)")
    stamp()
    e("s_barrier")
    stamp()
    e("s_waitcnt vmcnt(8)")
    lab(f"L_sy{k}_n")
    e("s_waitcnt vmcnt(16)")
    stamp()
    e("s_barrier")
    stamp()

issue(sQp, OPT['ntq'])
e(f"s_cmp_lg_u32 s{sMode}, 0")
e("s_cbranch_scc1 L_havemask")
cm("block mask -> one bit row per lane")
e(f"s_mov_b32 s{sT0}, 0x7f807f80")
e(f"s_mov_b32 s{sT1}, 0x000f000f")
e(f"s_mov_b32 s{sT2}, -1")
e("v_mov_b32 v5, 0")
e("s_waitcnt vmcnt(0)" if OPT['nodma'] else "s_waitcnt vmcnt(8)")
for k in range(8): e(f"v_pk_add_u16 v{16+k}, v{16+k}, s{sT2}")
for k in range(8): e(f"v_pk_min_u16 v{16+k}, v{16+k}, s{sT0}")
for k in range(8): e(f"v_pk_sub_u16 v{16+k}, v{16+k}, s{sT0}")
for k in range(8): e(f"v_pk_lshrrev_b16 v{16+k}, s{sT1}, v{16+k}")
for k in range(8): e(f"v_lshl_or_b32 v5, v{16+k}, {2*k}, v5")
e("v_lshrrev_b32 v6, 15, v5")
e("v_or_b32 v5, v5, v6")
e("v_and_b32 v5, 0xffff, v5")
e("v_mov_b32 v6, v5")
e("s_nop 1")
e("v_permlane32_swap_b32 v5, v6")
e("s_nop 0")
e("v_lshl_or_b32 v5, v6, 16, v5")
e("v_cmp_eq_u32 vcc, 0, v5")
e(f"s_mov_b32 s{sEm}, vcc_lo")
e("s_nop 0")
e("v_cndmask_b32 v5, v5, -1, vcc")
e("s_nop 0")
e(f"v_readlane_b32 s{sMA}, v5, s{sIdx}")
lab("L_havemask")
e(f"s_mov_b32 s{sKm}, s{sMA}")
e(f"s_mov_b32 s{sVm}, s{sMA}")
pick(sKm, sKb)
issue(sKp, OPT['ntkv'])
skipslot()
e(f"s_mov_b32 s{sX}, 2")
e(f"s_cmp_lg_u32 s{sMode}, 0")
e("s_cbranch_scc1 L_lloop")
cm("pair this q block with the one of opposite rank")
e("v_bcnt_u32_b32 v6, v5, 0")
e("v_lshl_or_b32 v6, v6, 5, v1")
e("s_nop 0")
e(f"v_readlane_b32 s{sT0}, v6, s{sIdx}")
e("s_nop 1")
e(f"v_cmp_ge_u32 vcc, s{sT0}, v6")
e(f"s_bcnt1_i32_b32 s{sT1}, vcc_lo")
e(f"s_mov_b32 s{sQB}, 0")
for b in range(10, -1, -1):
    e(f"s_or_b32 s{sT0}, s{sQB}, {1<<b}")
    e(f"v_cmp_le_u32 vcc, s{sT0}, v6")
    e(f"s_bcnt1_i32_b32 s{sT2}, vcc_lo")
    e(f"s_cmp_ge_u32 s{sT2}, s{sT1}")
    e(f"s_cselect_b32 s{sQB}, s{sT0}, s{sQB}")
e(f"s_and_b32 s{sQB}, s{sQB}, 31")
e(f"v_readlane_b32 s{sMB}, v5, s{sQB}")
e(f"s_bcnt1_i32_b32 s{sT0}, s{sMA}")
e(f"v_mov_b32 v16, s{sT0}")
e(f"s_bcnt1_i32_b32 s{sT0}, s{sMB}")
e(f"v_mov_b32 v17, s{sT0}")
e(f"v_mov_b32 v18, s{sQB}")
e(f"v_mov_b32 v19, s{sEm}")
e(f"v_mov_b32 v20, {I_OFF}")
e("ds_write_b128 v20, v[16:19]")
e("s_waitcnt lgkmcnt(0)")
lab("L_lloop")
e(f"s_cmp_lg_u32 s{sKm}, 0")
e("s_cbranch_scc1 L_lK")
e(f"s_cmp_lg_u32 s{sKu}, 0")
e("s_cbranch_scc1 L_lNoK")
e(f"s_mov_b32 s{sKu}, 1")
e(f"s_mov_b32 s{sKm}, s{sMB}")
e(f"s_add_u32 s{sKb}, s{sHA}, 0x100000")
e(f"s_lshl_b32 s{sSo}, s{sQB}, 15")
e(f"s_add_u32 s{sSo}, s{sSo}, s{sKb}")
issue(sQp, OPT['ntq']); sync()
lab("L_lK")
pick(sKm, sKb)
if OPT['pair']:
    e(f"s_cmp_lg_u32 s{sX}, 2")
    e("s_cbranch_scc1 L_lKp")
    issue(sKp, OPT['ntkv']); sync()
    e("s_branch L_lV")
    lab("L_lKp")
    e("s_waitcnt vmcnt(8)"); stamp()
    e("s_barrier"); stamp()
    if OPT['pvm'] < 8: e(f"s_waitcnt vmcnt({OPT['pvm']})")
    issue(sKp, OPT['ntkv'])
else:
    issue(sKp, OPT['ntkv']); sync()
lab("L_lV")
e(f"s_cmp_lg_u32 s{sVm}, 0")
e("s_cbranch_scc1 L_lV2")
e(f"s_mov_b32 s{sVu}, 1")
e(f"s_mov_b32 s{sVm}, s{sMB}")
e(f"s_add_u32 s{sVb}, s{sHA}, 0x100000")
lab("L_lV2")
pick(sVm, sVb)
issue(sVp, OPT['ntkv']); sync()
e("s_branch L_lloop")
lab("L_lNoK")
skipslot()
e("s_waitcnt vmcnt(8)"); stamp()
e("s_barrier"); stamp()
e(f"s_cmp_lg_u32 s{sVm}, 0")
e("s_cbranch_scc1 L_lV3")
e(f"s_mov_b32 s{sVm}, s{sMB}")
e(f"s_add_u32 s{sVb}, s{sHA}, 0x100000")
lab("L_lV3")
pick(sVm, sVb)
issue(sVp, OPT['ntkv'])
e("s_waitcnt vmcnt(8)"); stamp()
e("s_barrier"); stamp()
stamp()
e("s_barrier"); stamp()
e("s_waitcnt vmcnt(0)"); stamp()
e("s_barrier"); stamp()
stamp()
e("s_barrier"); stamp()
stamp()
e("s_barrier"); stamp()
if OPT['stamp']:
    e(f"s_cmp_lg_u32 s{sWave}, 0")
    e("s_cbranch_scc1 L_nost")
    e(f"s_mov_b64 s[{sW}:{sW+1}], s[{sWs}:{sWs+1}]")
    e(f"s_lshl_b32 s{sT0}, s2, 9")
    e("s_memrealtime s[50:51]")
    e("s_waitcnt lgkmcnt(0)")
    e("v_writelane_b32 v41, s48, 62")
    e("v_writelane_b32 v41, s50, 63")
    e("v_lshlrev_b32 v42, 2, v0")
    e(f"buffer_store_dword v40, v42, s[{sW}:{sW+3}], s{sT0} offen")
    e(f"buffer_store_dword v41, v42, s[{sW}:{sW+3}], s{sT0} offen offset:256")
    e("s_waitcnt vmcnt(0)")
    lab("L_nost")
e(f"v_mov_b32 v20, {I_OFF}")
e("ds_read_b32 v16, v20 offset:16")
e("s_waitcnt lgkmcnt(0)")
e(f"v_readfirstlane_b32 s{sMode}, v16")
e("s_nop 3")
e(f"s_cmp_lg_u32 s{sMode}, 0")
e("s_cbranch_scc1 L_lpass")
e("s_endpgm")

lab("L_compute")
if OPT['prio_c']: e(f"s_setprio {OPT['prio_c']}")
e(f"s_and_b32 s{cT0}, s{sWave}, 1")
e(f"s_lshr_b32 s{cT1}, s{sWave}, 1")
e("v_and_b32 v1, 31, v0")
e("v_lshrrev_b32 v2, 5, v0")
e("v_and_b32 v3, 3, v0")
e("v_bfe_u32 v4, v0, 2, 2")
e("v_and_b32 v5, 16, v0")
e("v_lshl_or_b32 v6, v3, 2, v4")
e("v_or_b32 v6, v6, v5")
e(f"v_mul_u32_u24 v6, {PS}, v6")
e("v_lshl_add_u32 v6, v2, 4, v6")
e(f"s_lshl_b32 s{cV0}, s{cT0}, 9")
e(f"s_lshl_b32 s{cV1}, s{cT1}, 9")
e(f"v_add_u32 v{aQl}, s{cV0}, v6")
e(f"v_add_u32 v{aKl}, s{cV1}, v6")
e("v_lshl_add_u32 v6, v4, 2, v2")
e(f"v_mul_u32_u24 v6, {PS}, v6")
e("v_lshl_add_u32 v6, v5, 1, v6")
e("v_lshl_add_u32 v6, v3, 3, v6")
e(f"s_lshl_b32 s{cV0}, s{sWave}, 7")
e(f"v_add_u32 v6, s{cV0}, v6")
e(f"v_add_u32 v{aV0l}, s{cV1}, v6")
e(f"s_xor_b32 s{cV1}, s{cV1}, 512")
e(f"v_add_u32 v{aV1l}, s{cV1}, v6")
e("v_lshlrev_b32 v6, 4, v0")
e(f"s_lshl_b32 s{cV0}, s{cT0}, 12")
e(f"s_lshl_b32 s{cV1}, s{cT1}, 11")
e(f"s_or_b32 s{cV0}, s{cV0}, s{cV1}")
for reg, x in ((aPw,0),(aP01,2048),(aP10,4096),(aP11,6144)):
    e(f"s_xor_b32 s{cV1}, s{cV0}, {x}")
    e(f"s_add_u32 s{cV1}, s{cV1}, {P_OFF}")
    e(f"v_add_u32 v{reg}, s{cV1}, v6")
e("v_lshlrev_b32 v6, 4, v1")
e(f"s_lshl_b32 s{cV0}, s{cT0}, 9")
e(f"s_add_u32 s{cV1}, s{cV0}, {L_OFF}")
e(f"v_add_u32 v{aLr0}, s{cV1}, v6")
e(f"v_xor_b32 v{aLr1}, 0x200, v{aLr0}")
e(f"v_lshl_add_u32 v{aLw}, v2, 2, v{aLr0}")
e(f"s_lshl_b32 s{cV1}, s{cT1}, 3")
e(f"v_add_u32 v{aLw}, s{cV1}, v{aLw}")
e(f"v_add_u32 v{aMw}, {M_OFF-L_OFF+1024}, v{aLw}")
e(f"s_mul_i32 s{cV0}, s{sWave}, {32*TS}")
e(f"s_add_u32 s{cV0}, s{cV0}, {T_OFF}")
e(f"v_mul_u32_u24 v6, {TS}, v1")
e("v_lshl_add_u32 v6, v2, 3, v6")
e(f"v_add_u32 v{aTw}, s{cV0}, v6")
e("v_lshrrev_b32 v7, 3, v0")
e("v_and_b32 v8, 7, v0")
e(f"v_mul_u32_u24 v6, {TS}, v7")
e("v_lshl_add_u32 v6, v8, 4, v6")
e(f"v_add_u32 v{aTr}, s{cV0}, v6")
e("v_lshlrev_b32 v6, 9, v7")
e("v_lshl_add_u32 v6, v8, 4, v6")
e(f"s_lshl_b32 s{cV0}, s{cT0}, 14")
e(f"s_lshl_b32 s{cV1}, s{sWave}, 7")
e(f"s_add_u32 s{cV0}, s{cV0}, s{cV1}")
e(f"v_add_u32 v{aO}, s{cV0}, v6")
e(f"v_mov_b32 v{nM}, 0")
e(f"v_mov_b32 v{nMB}, 0")
e(f"v_mov_b32 v{t1}, {I_OFF}")
e(f"s_mov_b32 s{cFail}, 0")
e(f"s_mov_b32 s{cOne}, 0x3f803f80")
e(f"s_mov_b32 s{cTwo}, {2*SLOT}")
e("s_waitcnt lgkmcnt(0)")
e(f"s_mov_b64 s[{sW}:{sW+1}], s[{sOp}:{sOp+1}]")
e(f"s_mov_b32 s{sW+2}, 0x1000000")
PFS = "%05d" % OPT['pf']
sPf, sPq, sPo, sPoq, vPf = 48, 52, 56, 57, 252
def pfs(stage):
    for j in range(5):
        if PFS[j] != str(stage): continue
        if j < 4:
            off = (j >> 1)*0x100000 + (j & 1)*0x80000
            e(f"s_add_u32 s{cV0}, s{sPo}, {off}")
            e(f"buffer_load_dword v{vPf+1}, v{vPf}, s[{sPf}:{sPf+3}], s{cV0} offen nt")
        else:
            e(f"buffer_load_dword v{vPf+1}, v{vPf}, s[{sPq}:{sPq+3}], s{sPoq} offen nt")
if PFS != "99999":
    cm("L2 warm-up: every workgroup of the XCD touches 1/32 of each K/V tile")
    e(f"v_lshlrev_b32 v{vPf}, 15, v7")
    e(f"v_lshl_or_b32 v{vPf}, v8, 7, v{vPf}")
    e(f"s_cmp_lt_u32 s{sWave}, 2")
    e(f"s_cselect_b64 s[{sPf}:{sPf+1}], s[{sKp}:{sKp+1}], s[{sVp}:{sVp+1}]")
    e(f"s_mov_b64 s[{sPf+2}:{sPf+3}], s[{sW+2}:{sW+3}]")
    e(f"s_mov_b64 s[{sPq}:{sPq+1}], s[{sQp}:{sQp+1}]")
    e(f"s_mov_b64 s[{sPq+2}:{sPq+3}], s[{sW+2}:{sW+3}]")
    e(f"s_lshl_b32 s{sPo}, s{sIdx}, 10")
    e(f"s_add_u32 s{sPo}, s{sPo}, s{sHA}")
    e(f"s_lshl_b32 s{sPoq}, s{sWave}, 18")
    e(f"s_add_u32 s{sPoq}, s{sPoq}, s{sPo}")
    e(f"s_add_u32 s{sPoq}, s{sPoq}, 0x100000")
    e(f"s_lshl_b32 s{cV0}, s{cT0}, 18")
    e(f"s_add_u32 s{sPo}, s{sPo}, s{cV0}")
pfs(0)
lab("L_cpass")
e("s_barrier")
pfs(1)
e(f"ds_read_b128 {vr(PF,4)}, v{t1}")
e(f"s_mov_b32 s{cXo}, 0")
e(f"s_mov_b32 s{cT}, -1")
e(f"s_lshl_b32 s{cOA}, s{sIdx}, 15")
e(f"s_add_u32 s{cOA}, s{cOA}, s{sHA}")
e("s_waitcnt lgkmcnt(0)")
e(f"v_readfirstlane_b32 s{cNA}, v{PF}")
e(f"v_readfirstlane_b32 s{cN}, v{PF+1}")
e(f"v_readfirstlane_b32 s{cOB}, v{PF+2}")
e(f"v_readfirstlane_b32 s{cT0}, v{PF+3}")
e("s_nop 3")
e(f"s_add_u32 s{cN}, s{cN}, s{cNA}")
e(f"s_bitcmp1_b32 s{cT0}, s{sIdx}")
e(f"s_cselect_b32 s{cCB}, 0, {CSCALE}")
e(f"s_bitcmp1_b32 s{cT0}, s{cOB}")
e(f"s_cselect_b32 s{cC}, 0, {CSCALE}")
e(f"s_lshl_b32 s{cOB}, s{cOB}, 15")
e(f"s_add_u32 s{cOB}, s{cOB}, s{sHA}")
e(f"s_add_u32 s{cOB}, s{cOB}, 0x100000")
e(f"s_sub_u32 s{cQv}, s{cNA}, 1")
e(f"s_bitcmp1_b32 s{cNA}, 0")
e(f"s_mov_b32 s{cXB}, {SLOT}")
e(f"s_cselect_b32 s{cXB}, {3*SLOT}, s{cXB}")
lab("L_vtailQ")
phaseV_tail(True)
e("s_branch L_event")

lab("L_qskip")
e(f"s_andn2_b32 s{cSpec}, s{cSpec}, 4")
LQ = phaseQ(True)
lab("L_vspec")
cm("rare work at the head of phase V; bits: 1 first block, 2 last block, 4 track max")
e(f"s_bitcmp1_b32 s{cSpec}, 1")
e("s_cbranch_scc0 L_vs1")
e(f"v_add_f32 v{t0}, v{l0}, v{l1}")
e(f"v_mov_b32 v{l0}, 0")
e(f"v_mov_b32 v{l1}, 0")
e(f"ds_write_b32 v{aLw}, v{t0}")
lab("L_vs1")
e(f"s_bitcmp1_b32 s{cSpec}, 2")
e("s_cbranch_scc0 L_vs2")
e("s_nop 7")
for k in range(8): e(f"v_max3_f32 v{mx}, v{S+2*k}, v{S+2*k+1}, v{mx}")
lab("L_vs2")
e(f"s_bitcmp1_b32 s{cSpec}, 0")
e(f"s_cbranch_scc1 L_vfirst")
e(f"s_and_b32 s{cSpec}, s{cSpec}, 4")
e("s_branch L_vnorm")
lab("L_vfirst")
e(f"s_and_b32 s{cSpec}, s{cSpec}, 4")
phaseV_head(LQ, True, 8)
e("s_branch L_vmid")

out.append(".p2align 6")
lab("L_q")
n0 = len(out)
LQ2 = phaseQ(False)
assert LQ2.q == LQ.q, (LQ.q, LQ2.q)
e("s_cbranch_scc1 L_vspec")
pre = 0
while "v_mfma" not in out[-1-pre]: pre += 1
lab("L_vnorm")
LV = phaseV_head(LQ, False, pre)
lab("L_vmid")
phaseV_mid(LV)
e("s_cbranch_scc1 L_vtailQ")
phaseV_tail(False)
e("s_cbranch_scc1 L_q")
lab("L_event")
cm("t = index of the coming iteration")
e(f"s_cmp_eq_u32 s{cT}, s{cNA}")
e("s_cbranch_scc1 L_epi")
e(f"s_cmp_eq_u32 s{cT}, s{cN}")
e("s_cbranch_scc0 L_next")
lab("L_epi")
epilogue()
e(f"s_cmp_eq_u32 s{cT}, s{cN}")
e("s_cbranch_scc1 L_done")
lab("L_next")
for st_, tv in ((2, -1), (3, 0)):
    if str(st_) in PFS:
        e(f"s_cmp_lg_u32 s{cT}, {tv}")
        e(f"s_cbranch_scc1 L_npf{st_}")
        pfs(st_)
        lab(f"L_npf{st_}")
e(f"s_cmp_eq_u32 s{sMode}, 1")
e(f"s_cselect_b32 s{cSpec}, 4, 0")
e(f"s_cmp_eq_u32 s{cT}, 0")
e(f"s_addc_u32 s{cSpec}, s{cSpec}, 0")
e(f"s_cmp_eq_u32 s{cT}, s{cNA}")
e(f"s_addc_u32 s{cSpec}, s{cSpec}, 0")
e(f"s_add_u32 s{cT1}, s{cT}, 1")
e(f"s_sub_u32 s{cEv}, s{cN}, 1")
e(f"s_cmp_eq_u32 s{cT1}, 0")
e("s_cbranch_scc1 L_last")
e(f"s_cmp_eq_u32 s{cT1}, s{cNA}")
e("s_cbranch_scc1 L_last")
e(f"s_cmp_lg_u32 s{cT1}, s{cN}")
e("s_cbranch_scc1 L_q")
lab("L_last")
e(f"s_or_b32 s{cSpec}, s{cSpec}, 2")
e(f"s_mov_b32 s{cEv}, s{cT1}")
e(f"s_cmp_lg_u32 s{cT1}, s{cN}")
e("s_cbranch_scc1 L_q")
e("s_branch L_qskip")
lab("L_done")
cm("pass control: 0 optimistic -> (range check failed) 1 true max -> 2 final")
if OPT['nodma'] or OPT['nopw']: e(f"s_mov_b32 s{cFail}, 0")
e(f"s_cmp_lg_u32 s{cFail}, 0")
e(f"s_cselect_b32 s{cT0}, 1, 0")
e(f"s_cmp_eq_u32 s{sMode}, 1")
e(f"s_cselect_b32 s{cT0}, 2, s{cT0}")
e(f"s_cmp_eq_u32 s{sMode}, 2")
e(f"s_cselect_b32 s{sMode}, 0, s{cT0}")
e(f"v_mov_b32 v{t0}, s{sMode}")
e(f"ds_write_b32 v{t1}, v{t0} offset:16")
e(f"ds_write_b32 v{aMw}, v{mx}")
e("s_waitcnt lgkmcnt(0)")
e("s_barrier")
e(f"s_cmp_eq_u32 s{sMode}, 0")
e("s_cbranch_scc1 L_end")
e("s_waitcnt vmcnt(0)")
e(f"s_cmp_eq_u32 s{sMode}, 1")
e("s_cbranch_scc1 L_cpass")
e(f"ds_read_b128 {vr(PF,4)}, v{aLr0} offset:{M_OFF-L_OFF}")
e(f"ds_read_b128 {vr(PF+4,4)}, v{aLr0} offset:{M_OFF-L_OFF+1024}")
e("s_waitcnt lgkmcnt(0)")
e(f"v_max3_f32 v{PF}, v{PF}, v{PF+1}, v{PF+2}")
e(f"v_max3_f32 v{PF+4}, v{PF+4}, v{PF+5}, v{PF+6}")
e(f"v_max_f32 v{PF}, v{PF}, v{PF+3}")
e(f"v_max_f32 v{PF+4}, v{PF+4}, v{PF+7}")
e(f"v_mul_f32 v{nMB}, s{cCB}, v{PF}")
e(f"v_mul_f32 v{nM}, s{cC}, v{PF+4}")
e(f"v_sub_f32 v{nMB}, 0, v{nMB}")
e(f"v_sub_f32 v{nM}, 0, v{nM}")
e("s_branch L_cpass")
lab("L_end")
e("s_endpgm")
out += ['.section .rodata,"a"', ".p2align 6", f".amdhsa_kernel {NAME}_kernel",
        "  .amdhsa_next_free_vgpr 256", "  .amdhsa_next_free_sgpr 64", "  .amdhsa_accum_offset 256",
        "  .amdhsa_group_segment_fixed_size 0", "  .amdhsa_kernarg_size 56", "  .amdhsa_user_sgpr_count 2",
        "  .amdhsa_user_sgpr_kernarg_segment_ptr 1", "  .amdhsa_system_sgpr_workgroup_id_x 1", ".end_amdhsa_kernel"]
open(sys.argv[1], "w").write("\n".join(out) + "\n")
```
